```python
import torch

def _softmax(x, axis=-1):
    return torch.softmax(x, dim=axis)

def _gelu(x):
    return torch.nn.functional.gelu(x, approximate='tanh')

def _silu(x):
    return torch.nn.functional.silu(x)

def _sigmoid(x):
    return torch.sigmoid(x)

def _layernorm(x, axis=-1, eps=1e-05):
    m = x.mean(dim=axis, keepdim=True)
    v = x.var(dim=axis, keepdim=True, unbiased=False)
    return (x - m) / torch.sqrt(v + eps)

def _scatter_add(tgt, idx, src, axis=0):
    return tgt.clone().index_add_(axis, idx, src)

def _segment_sum(src, seg, n):
    out = torch.zeros((n,) + src.shape[1:], dtype=src.dtype)
    return out.index_add_(0, seg, src)

def _pad(x, pw):
    flat = tuple((v for pair in reversed(pw) for v in pair))
    return torch.nn.functional.pad(x, flat)
kernel_name = 'adaLN_cond__sliding_block_cached__dense_activation_silu__decode'

def setup_inputs():

    _w = lambda a: (lambda t: t.to(torch.bfloat16) if t.is_floating_point() else t)(torch.as_tensor(a))

    def _A_setup():
        B, Sq, D = (1, 1, 448)
        Hq, Hkv, Sk, Dh = (16, 8, 65536, 256)
        assert Hq % Hkv == 0, (Hq, Hkv)
        return {'x': _w((lambda *s: torch.randn(*s, dtype=torch.bfloat16) * 0.1)(B, Sq, D)), 'k_cache': _w((lambda *s: torch.randn(*s, dtype=torch.bfloat16) * 0.8)(B, Hkv, Sk, Dh)), 'v_cache': _w((lambda *s: torch.randn(*s, dtype=torch.bfloat16) * 3.2)(B, Hkv, Sk, Dh)), 'wq': _w((lambda *s: torch.randn(*s, dtype=torch.bfloat16) * 0.8)(D, Hq * Dh) * D ** (-0.5)), 'wo': _w((lambda *s: torch.randn(*s, dtype=torch.bfloat16) * 3.2)(Hq * Dh, D) * (Hq * Dh) ** (-0.5))}
    _A_in = _A_setup()

    def _B_setup():
        B, S, D, F = (1, 1, 448, 1792)
        return {'x': _w((lambda *s: torch.randn(*s, dtype=torch.bfloat16) * 0.1)(B, S, D)), 'w1': _w((lambda *s: torch.randn(*s, dtype=torch.bfloat16) * 3.2)(D, F) * D ** (-0.5)), 'w2': _w((lambda *s: torch.randn(*s, dtype=torch.bfloat16) * 3.2)(F, D) * F ** (-0.5))}
    _B_in = _B_setup()
    return {'A_x': _A_in['x'], 'A_k_cache': _A_in['k_cache'], 'A_v_cache': _A_in['v_cache'], 'A_wq': _A_in['wq'], 'A_wo': _A_in['wo'], 'B_x': _B_in['x'], 'B_w1': _B_in['w1'], 'B_w2': _B_in['w2'], 'c': _w((lambda *s: torch.randn(*s, dtype=torch.bfloat16) * 0.4)(1, 448) * 8.0), 'w_mod': _w((lambda *s: torch.randn(*s, dtype=torch.bfloat16) * 0.4)(448, 6 * 448) * 448 ** (-0.5) * 8.0)}

def reference(A_x, A_k_cache, A_v_cache, A_wq, A_wo, B_x, B_w1, B_w2, c, w_mod):

    def _A_ref(x, k_cache, v_cache, wq, wo):
        B, Sq, D = x.shape
        Hq, Dh = (16, 256)
        Hkv, Sk = (k_cache.shape[1], k_cache.shape[2])
        W = min(4096, max(256, Sk // 4))
        rep = Hq // Hkv
        q = (lambda x, *d: x.permute(*d))((x @ wq).reshape(B, Sq, Hq, Dh), 0, 2, 1, 3)
        k = (lambda x, n, axis: torch.repeat_interleave(x, n, dim=axis))(k_cache[:, :, Sk - W:, :], rep, axis=1)
        v = (lambda x, n, axis: torch.repeat_interleave(x, n, dim=axis))(v_cache[:, :, Sk - W:, :], rep, axis=1)
        scores = torch.einsum('bhqd,bhkd->bhqk', q, k) * Dh ** (-0.5)
        p = _softmax(scores, axis=-1)
        o = torch.einsum('bhqk,bhkd->bhqd', p, v)
        return (lambda x, *d: x.permute(*d))(o, 0, 2, 1, 3).reshape(B, Sq, Hq * Dh) @ wo

    def _B_ref(x, w1, w2):
        h = torch.einsum('bsd,df->bsf', x, w1)
        h = _silu(h)
        out = torch.einsum('bsf,fd->bsd', h, w2)
        return out
    x = A_x
    mod = (_silu(c) @ w_mod).reshape(c.shape[0], 6, 1, -1)
    sa, ca, ga, sb, cb, gb = (mod[:, 0].clone(), mod[:, 1].clone(), mod[:, 2].clone(), mod[:, 3].clone(), mod[:, 4].clone(), mod[:, 5].clone())
    h = _layernorm(x, axis=-1) * (1 + ca) + sa
    x = x + ga * _A_ref(h, A_k_cache, A_v_cache, A_wq, A_wo)
    h = _layernorm(x, axis=-1) * (1 + cb) + sb
    x = x + gb * _B_ref(h, B_w1, B_w2)
    return x
```

```python
KN = 'adaLN_cond__sliding_block_cached__dense_activation_silu__decode_kernel'
class A:
    def __init__(self): self.L = []
    def __call__(self, s):
        for line in s.strip('\n').split('\n'):
            self.L.append(line.strip())
    def head(self, grid, block, lds=0, kn=KN):
        self(f'; @launch grid=({grid},1,1) block=({block},1,1) lds={lds}')
        self('.amdgcn_target "amdgcn-amd-amdhsa--gfx950"')
        self(f'.text\n.globl {kn}\n.p2align 8\n.type {kn},@function\n{kn}:')
    def tail(self, nv, ns=96, acc=None, kn=KN):
        if acc is None: acc = min(256, (nv + 3) // 4 * 4)
        self(f'''.section .rodata,"a"
.p2align 6
.amdhsa_kernel {kn}
  .amdhsa_next_free_vgpr {nv}
  .amdhsa_next_free_sgpr {ns}
  .amdhsa_accum_offset {acc}
  .amdhsa_group_segment_fixed_size 0
  .amdhsa_kernarg_size 104
  .amdhsa_user_sgpr_count 2
  .amdhsa_user_sgpr_kernarg_segment_ptr 1
  .amdhsa_system_sgpr_workgroup_id_x 1
.end_amdhsa_kernel''')
    def srd(self, d, b, n):
        self(f's_mov_b32 s{d}, s{b}\ns_mov_b32 s{d+1}, s{b+1}\ns_mov_b32 s{d+2}, {n}\ns_mov_b32 s{d+3}, 0x20000')
    def text(self): return '\n'.join(self.L) + '\n'
```

```python
import re
TRANS = ('v_exp_f32', 'v_log_f32', 'v_rcp_f32', 'v_rsq_f32', 'v_sqrt_f32', 'v_sin_f32', 'v_cos_f32')
def regs(tok):
    tok = tok.strip()
    tok = tok.replace('abs(', '').replace(')', '').lstrip('-|').rstrip('|')
    m = re.fullmatch(r'([vsa])\[(\d+):(\d+)\]', tok)
    if m: return {f'{m.group(1)}{i}' for i in range(int(m.group(2)), int(m.group(3)) + 1)}
    m = re.fullmatch(r'([vsa])(\d+)', tok)
    if m: return {tok}
    if tok == 'vcc': return {'vcc'}
    if tok == 'exec': return {'exec'}
    if tok == 'm0': return {'m0'}
    return set()
def parse(line):
    s = line.split(';')[0].strip()
    if not s or s.endswith(':') or s.startswith('.'): return None
    p = s.split(None, 1)
    op = p[0]; rest = p[1] if len(p) > 1 else ''
    ops = [x.strip() for x in re.split(r',(?![^\[]*\])', rest)] if rest else []
    mods = ''
    if ops:
        last = ops[-1].split(None, 1)
        ops[-1] = last[0]
        mods = last[1] if len(last) > 1 else ''
    d = dict(op=op, ops=ops, mods=mods, w=set(), r=set(), kind='other', c=set(), ab=set(), data=set())
    R = [regs(x) for x in ops]
    U = lambda l: set().union(*l) if l else set()
    if op.startswith('v_mfma'):
        d['kind'] = 'mfma'; d['w'] = R[0]; d['ab'] = R[1] | R[2]; d['c'] = R[3]; d['r'] = d['ab'] | d['c']
        d['passes'] = 8 if ('32x32x16' in op or '16x16x4_f32' in op) else 4
        d['sgemm'] = op.endswith('_f32') and 'x4_f32' in op
    elif op.startswith('v_'):
        d['kind'] = 'valu'
        if op.startswith('v_permlane') and 'swap' in op:
            d['w'] = R[0] | R[1]; d['r'] = R[0] | R[1]; d['perm'] = True
        elif op.startswith('v_cmp'):
            d['w'] = R[0]; d['r'] = U(R[1:])
        elif op.startswith(('v_add_co', 'v_addc_co', 'v_sub_co', 'v_subb_co')):
            d['w'] = R[0] | R[1]; d['r'] = U(R[2:])
        else:
            d['w'] = R[0]; d['r'] = U(R[1:])
            if op.startswith(('v_fmac', 'v_dot2c', 'v_writelane')) or 'dpp' in op or 'row_' in mods or 'quad_perm' in mods: d['r'] |= R[0]
        d['dpp'] = ('dpp' in op) or 'row_' in mods or 'quad_perm' in mods
        d['trans'] = op.replace('_e32', '').replace('_e64', '') in TRANS
        d['rdlane'] = op.startswith(('v_readlane', 'v_readfirstlane'))
    elif op.startswith(('buffer_', 'global_')):
        d['kind'] = 'vmem'
        lds = ' lds' in ' ' + mods or '_lds_' in op
        d['lds'] = lds
        if 'load' in op and not lds:
            d['w'] = R[0]; d['r'] = U(R[1:])
        else:
            d['r'] = U(R)
            if 'store' in op and ('x4' in op or 'x3' in op):
                d['data'] = R[0] if op.startswith('buffer_') else R[1]
            if 'atomic' in op and 'sc0' in mods: d['w'] = R[0]
    elif op.startswith('ds_'):
        d['kind'] = 'ds'
        if op.startswith(('ds_read', 'ds_bpermute', 'ds_permute', 'ds_swizzle')) or '_rtn' in op:
            d['w'] = R[0]; d['r'] = U(R[1:])
        else: d['r'] = U(R)
    elif op.startswith('s_'):
        d['kind'] = 'salu'
        if op.startswith(('s_cmp', 's_cbranch', 's_branch', 's_waitcnt', 's_nop', 's_barrier', 's_endpgm', 's_sleep', 's_setprio', 's_bitcmp')):
            d['r'] = U(R)
        else:
            d['w'] = R[0] if R else set(); d['r'] = U(R[1:])
            if 'saveexec' in op: d['w'] = d['w'] | {'exec'}
    return d
def need(p, c):
    n = 0
    V = lambda s: {x for x in s if x[0] in 'va' and x != 'vcc'}
    S = lambda s: {x for x in s if x[0] == 's' or x == 'vcc'}
    if p['kind'] == 'valu':
        wv = V(p['w']); ws = S(p['w'])
        if c['kind'] == 'valu':
            if c.get('dpp') and wv & c['r']: n = max(n, 2)
            if c.get('perm') and wv & c['r']: n = max(n, 2)
            if c.get('rdlane') and wv & c['r']: n = max(n, 1)
            if p.get('trans') and wv & c['r']: n = max(n, 1)
            if ws & c['r']: n = max(n, 4 if c['op'].startswith(('v_readlane', 'v_writelane')) else 2)
            if 'vcc' in ws and c['op'].startswith('v_cndmask') and len(c['ops']) <= 4 and c['ops'][-1] == 'vcc': n = max(n, 2)
        if c['kind'] == 'mfma' and wv & c['r']: n = max(n, 2)
        if c['kind'] == 'vmem' and ws & c['r']: n = max(n, 5)
        if p.get('trans') and c['kind'] in ('vmem', 'ds', 'mfma') and wv & c['r']: n = max(n, 1)
    if p['kind'] == 'mfma':
        ps = p['passes']
        full = {4: 8, 8: 12}[ps] if not p.get('sgemm') else 10
        if c['kind'] == 'mfma':
            if p['w'] & c['ab']: n = max(n, full)
            if p['w'] & c['c'] and p['w'] != c['c']: n = max(n, {4: 6, 8: 10}[ps])
            if p['w'] & c['c'] and p['w'] == c['c'] and p['op'] != c['op']: n = max(n, {4: 6, 8: 10}[ps])
            if p['w'] & c['w'] and not (p['w'] == c['c']): n = max(n, full)
        elif c['kind'] in ('valu', 'vmem', 'ds'):
            if p['w'] & (c['r'] | c['w']): n = max(n, full)
            if c['kind'] == 'valu' and p['c'] & c['w']: n = max(n, {4: 3, 8: 7}[ps])
    if p['kind'] == 'salu' and 'm0' in p['w'] and c['kind'] == 'vmem' and c.get('lds'): n = max(n, 1)
    if p['kind'] == 'salu' and 'exec' in p['w'] and c['kind'] == 'mfma': n = max(n, 2)
    if p['kind'] == 'salu' and 'exec' in p['w'] and c['kind'] == 'valu' and (c.get('dpp') or c.get('perm')): n = max(n, 1)
    if p['kind'] == 'vmem' and p['data'] and c['kind'] in ('valu', 'mfma', 'ds', 'vmem') and p['data'] & c['w']: n = max(n, 2)
    return n
def fix(lines):
    out = []; hist = []
    for line in lines:
        d = parse(line)
        if d is None:
            out.append(line); continue
        req = 0
        for (p, dist) in hist:
            req = max(req, need(p, d) - dist)
        if req > 0:
            out.append(f's_nop {req - 1}')
            hist = [(p, dist + req) for (p, dist) in hist]
        out.append(line)
        step = 1
        if d['op'] == 's_nop': step = int(d['ops'][0], 0) + 1
        hist = [(p, dist + step) for (p, dist) in hist if dist + step < 14]
        if d['op'] in ('s_branch', 's_endpgm', 's_setpc_b64'): hist = []
        else: hist.append((d, 0))
    return out
```

```python
import sys
from asmlib import *
import hz

WS_E, WS_MODF, WS_ML, WS_H, WS_Q = 0x0, 0x2000, 0x8000, 0x60000, 0x100000
WS_T2, WS_T3 = 0x10000, 0x17000
WS_MODP = 0x30000
WS_O = 0x80000
WS_TS = 0x200000
C_KISS, C_KRDY, C_Q, C_MX, C_P, C_VISS, C_S1, C_WO = [4 * i for i in range(8)]
L_MX, L_LSUM, L_ST, L_RED, L_STG, L_Q, L_P, L_K = 32, 64, 192, 256, 2304, 3456, 4608, 44032
LDS_BYTES = L_K + 9 * 8192
LOG2E = 0x3fb8aa3b
CAP = 1 << 17

def gen(WIN=14, TS=False, NT='nt', PRE=3, R=8, SLP=0):
    a = A()
    a.head(256, 704, LDS_BYTES)
    uid = [0]
    def lab(p):
        uid[0] += 1; return f'L_{p}{uid[0]}'
    def ts(k):
        if TS: a(f's_memrealtime s[98:99]\ns_waitcnt lgkmcnt(0)\nv_writelane_b32 v0, s98, {k}')
    def rnd(d, s): a(f'v_cvt_pk_bf16_f32 {d}, 0, {s}')
    def spin_lds(off, cmp_sreg_or_imm, vt='v2', vz='v3'):
        l = lab('spin')
        a(f's_mov_b32 s97, 0\nv_mov_b32 {vz}, 0\n{l}:')
        a(f'ds_read_b32 {vt}, {vz} offset:{off}\ns_add_u32 s97, s97, 1\ns_cmp_ge_u32 s97, {CAP * 4}\ns_cbranch_scc1 L_end')
        a(f's_waitcnt lgkmcnt(0)\nv_cmp_ne_u32 vcc, {cmp_sreg_or_imm}, {vt}\ns_cbranch_vccnz {l}')
    def signal(off, vz='v2', vo='v3', rtn=None):
        a(f'v_mov_b32 {vz}, 0\nv_mov_b32 {vo}, 1\ns_mov_b64 exec, 1')
        if rtn: a(f'ds_add_rtn_u32 {rtn}, {vz}, {vo} offset:{off}')
        else: a(f'ds_add_u32 {vz}, {vo} offset:{off}')
        a('s_mov_b64 exec, -1')
    def row_red(op, v, t=None):
        for sh in (8, 4, 2, 1):
            a(f'{op}_dpp {v}, {v}, {v} row_ror:{sh} row_mask:0xf bank_mask:0xf')
    def loads64(dst, n, srd, voff, soff, offs_fn, sstride=None):
        for i in range(n):
            a(f'buffer_load_dwordx2 v[{dst+2*i}:{dst+2*i+1}], {voff}, {srd}, {soff} offen {NT}')
            if i < n - 1: a(f's_add_u32 {soff}, {soff}, {offs_fn(i)}')
    def perms(dst, src, ksteps, selLo='s56', selHi='s57', waits=None):
        for s in range(ksteps):
            for r in range(4):
                if waits is not None: a(f's_waitcnt vmcnt({waits(s, r)})')
                for e in range(4):
                    lo = src + 16 * s + 4 * r + (e >> 1); hi = lo + 2
                    a(f'v_perm_b32 v{dst + 16*s + 4*e + r}, v{hi}, v{lo}, {selHi if e & 1 else selLo}')
    def gemv(D, Areg, B, ksteps):
        for s in range(ksteps):
            for e in range(4):
                c = '0' if s == 0 else f'v[{D+4*e}:{D+4*e+3}]'
                a(f'v_mfma_f32_16x16x32_bf16 v[{D+4*e}:{D+4*e+3}], v[{Areg+4*s}:{Areg+4*s+3}], v[{B+16*s+4*e}:{B+16*s+4*e+3}], {c}')
        for e in range(1, 4):
            a(f'v_mov_b32_dpp v{D}, v{D+4*e} quad_perm:[0,1,2,3] row_mask:{1<<e:#x} bank_mask:0xf')
    def red_scatter(x):
        a(f'v_permlane32_swap_b32 v{x}, v{x+2}\nv_permlane32_swap_b32 v{x+1}, v{x+3}')
        a(f'v_add_f32 v{x}, v{x}, v{x+2}\nv_add_f32 v{x+1}, v{x+1}, v{x+3}')
        a(f'v_permlane16_swap_b32 v{x}, v{x+1}\nv_add_f32 v{x}, v{x}, v{x+1}')
    def publish_pk(val, soff):
        a(f'v_mov_b32 v5, {val}\nv_mov_b32 v4, {val}')
        a('v_lshlrev_b32 v7, 3, v8\nv_lshrrev_b32 v6, 5, v1\nv_lshl_add_u32 v7, v6, 2, v7')
        a('v_permlane16_swap_b32 v4, v5')
        a('v_lshl_add_u32 v6, v6, 2, 64\nv_add_u32 v6, 64, v6')
        a('v_cvt_pk_bf16_f32 v4, v4, v5')
        a('v_mov_b32_dpp v7, v6 quad_perm:[0,1,2,3] row_mask:0xa bank_mask:0xf')
        a('v_xor_b32_dpp v5, v4, v4 row_ror:8 row_mask:0xf bank_mask:0xf')
        for sh in (4, 2, 1): a(f'v_xor_b32_dpp v5, v5, v5 row_ror:{sh} row_mask:0xf bank_mask:0xf')
        a('s_or_b32 s58, s30, 1\ns_mov_b64 exec, 0x10000\nv_xor_b32 v5, s58, v5\ns_mov_b64 exec, -1')
        a('v_mov_b32_dpp v4, v5 quad_perm:[0,1,2,3] row_mask:0xa bank_mask:0xf')
        a('s_mov_b32 exec_lo, 0x1ffff\ns_mov_b32 exec_hi, 0x1ffff')
        for r in range(R): a(f'buffer_store_dword v4, v7, s[36:39], {soff} offen offset:{r*256} sc1')
        a('s_mov_b64 exec, -1')
    def poll_pk(soff, dst, sel):
        l = lab('pk'); l2 = lab('pkg'); l3 = lab('pkc'); l4 = lab('pkd')
        a(f's_mov_b32 s97, 0\ns_add_u32 s94, s28, {soff}\ns_addc_u32 s95, s29, 0\ns_or_b32 s96, s30, 1\n{l}:')
        a(f's_cmp_ge_u32 s97, {R}\ns_cbranch_scc1 {l2}')
        a(f's_load_dwordx16 s[60:75], s[94:95], 0\ns_load_dwordx16 s[76:91], s[94:95], 64\ns_load_dwordx2 s[92:93], s[94:95], 128')
        a(f's_add_u32 s94, s94, 256\ns_addc_u32 s95, s95, 0\ns_branch {l3}')
        a(f'{l2}:\ns_and_b32 s58, {sel}, {R-1}\ns_lshl_b32 s58, s58, 8\ns_add_u32 s58, s58, {soff}\ns_add_u32 s94, s28, s58\ns_addc_u32 s95, s29, 0')
        a(f's_load_dwordx16 s[60:75], s[94:95], 0 glc\ns_load_dwordx16 s[76:91], s[94:95], 64 glc\ns_load_dwordx2 s[92:93], s[94:95], 128 glc')
        a(f'{l3}:\ns_add_u32 s97, s97, 1\ns_cmp_ge_u32 s97, {CAP}\ns_cbranch_scc1 L_end')
        a('s_waitcnt lgkmcnt(0)')
        for k in range(16): a(f's_xor_b64 s[92:93], s[92:93], s[{60+2*k}:{61+2*k}]')
        a(f's_xor_b32 s92, s92, s93\ns_cmp_eq_u32 s92, s96\ns_cbranch_scc1 {l4}')
        if SLP: a(f's_sleep {SLP}')
        a(f's_branch {l}\n{l4}:')
        if TS: a(f'v_writelane_b32 v0, s97, 14')
        for kq in range(4):
            if kq == 1: a('s_mov_b32 exec_lo, 0xffff0000')
            if kq == 2: a('s_mov_b32 exec_lo, 0')
            if kq == 3: a('s_mov_b32 exec_hi, 0xffff0000')
            for s in range(2):
                for h in range(2):
                    b = 60 + 16 * s + 4 * kq + 2 * h
                    a(f'v_mov_b64 v[{dst+4*s+2*h}:{dst+4*s+2*h+1}], s[{b}:{b+1}]')
        a('s_mov_b64 exec, -1')
    def gather_sum(n, src, acc, voff, soff, wts=None, extra=None):
        l = lab('g'); d = lab('gd')
        a(f's_mov_b32 s97, 0\n{l}:')
        for i in range(n):
            so, im = extra(i) if extra else (soff, i * 1024)
            a(f'buffer_load_dwordx4 v[{src+4*i}:{src+4*i+3}], {voff}, s[36:39], {so} offen offset:{im} sc1')
        for i in range(n):
            if wts is None and i == 0: continue
            a(f's_waitcnt vmcnt({n-1-i})')
            for r in range(4):
                if wts is not None:
                    if i == 0: a(f'v_mul_f32 v{acc+r}, v{wts}, v{src+r}')
                    else: a(f'v_fmac_f32 v{acc+r}, v{wts+i}, v{src+4*i+r}')
                else:
                    a(f'v_add_f32 v{acc+r}, v{src+r if i == 1 else acc+r}, v{src+4*i+r}')
        red_scatter(acc)
        if wts is not None: a(f'v_add_f32_dpp v{acc}, v{acc}, v{acc} row_ror:8 row_mask:0xf bank_mask:0xf')
        a(f'v_cmp_u_f32 vcc, v{acc}, v{acc}\ns_cbranch_vccz {d}')
        a(f'v_max3_u32 v{acc+1}, v{src}, v{src+1}, v{src+2}')
        rest = list(range(src + 3, src + 4 * n))
        while rest:
            if len(rest) >= 2: a(f'v_max3_u32 v{acc+1}, v{acc+1}, v{rest[0]}, v{rest[1]}'); rest = rest[2:]
            else: a(f'v_max_u32 v{acc+1}, v{acc+1}, v{rest[0]}'); rest = rest[1:]
        a(f'v_cmp_eq_u32 vcc, -1, v{acc+1}\ns_add_u32 s97, s97, 1\ns_cmp_ge_u32 s97, {CAP}\ns_cbranch_scc1 L_end\ns_cbranch_vccnz {l}')
        a(f'{d}:')

    a('s_cmp_ge_u32 s2, 256\ns_cbranch_scc1 L_exit')
    a('s_load_dwordx16 s[4:19], s[0:1], 0\ns_load_dwordx8 s[20:27], s[0:1], 64\ns_load_dwordx2 s[28:29], s[0:1], 96')
    if TS: a('s_memrealtime s[98:99]')
    a('v_lshrrev_b32 v2, 6, v0\nv_and_b32 v1, 63, v0')
    a('s_and_b32 s31, s2, 7\ns_lshr_b32 s32, s2, 3')
    a('v_readfirstlane_b32 s3, v2')
    a('s_mul_i32 s34, s32, 6\ns_lshl_b32 s48, s32, 3\ns_add_u32 s49, s48, s32\ns_sub_u32 s48, s48, 16\ns_sub_u32 s49, s49, 32')
    a('s_max_i32 s34, s34, s48\ns_max_i32 s34, s34, s49')
    a('s_cmp_ge_u32 s32, 8\ns_cselect_b32 s33, 8, 6\ns_cmp_ge_u32 s32, 16\ns_cselect_b32 s33, 9, s33')
    a('s_mov_b32 s38, 0x400000\ns_mov_b32 s39, 0x20000\ns_mov_b32 s43, 0x20000\ns_mov_b32 s47, 0x20000')
    a('s_cmp_ge_u32 s3, 2\ns_cbranch_scc1 L_aux')
    a('v_lshrrev_b32 v2, 5, v1\nv_and_b32 v3, 31, v1\ns_lshl_b32 s48, s3, 1')
    a('v_xor_b32 v3, v2, v3\nv_xor_b32 v3, s48, v3\nv_lshlrev_b32 v2, 9, v2\nv_lshl_add_u32 v8, v3, 4, v2')
    a('v_xor_b32 v9, 64, v8\nv_xor_b32 v10, 0x80, v8\nv_xor_b32 v11, 0xc0, v8')
    a('s_lshl_b32 s50, s31, 25\ns_lshl_b32 s48, s34, 13\ns_add_u32 s50, s50, s48\ns_add_u32 s50, s50, 0x1e00000')
    a('s_lshl_b32 s48, s3, 10\ns_add_u32 s51, s50, s48')
    a(f's_sub_u32 s52, 9, s33\ns_lshl_b32 s52, s52, 13\ns_add_u32 s52, s52, s48\ns_add_u32 s52, s52, {L_K}')
    a('s_mov_b32 s42, 0x10000000\ns_mov_b32 s46, 0x10000000\ns_mov_b32 s53, 0')
    a(f's_lshl_b32 s54, s31, 5\ns_add_u32 s54, s54, s32\ns_lshl_b32 s54, s54, 11\ns_add_u32 s54, s54, s48\ns_add_u32 s54, s54, {WS_O}')
    a('v_mov_b32 v4, -1\nv_mov_b32 v5, -1\nv_mov_b32 v6, -1\nv_mov_b32 v7, -1\nv_lshlrev_b32 v3, 4, v1')
    a('s_waitcnt lgkmcnt(0)')
    if TS: a('v_writelane_b32 v0, s98, 0')
    a('s_mov_b64 s[40:41], s[6:7]\ns_mov_b64 s[44:45], s[8:9]\ns_mov_b64 s[36:37], s[28:29]')
    a('L_kloop:')
    for half in range(2):
        a('s_mov_b32 m0, s52')
        a(f's_waitcnt vmcnt({WIN-1})\nbuffer_load_dwordx4 v{8+2*half}, s[40:43], s51 offen {NT} lds')
        a(f's_waitcnt vmcnt({WIN-1})\nbuffer_load_dwordx4 v{9+2*half}, s[40:43], s51 offen offset:2048 {NT} lds')
        a('s_add_u32 s52, s52, 4096\ns_add_u32 s51, s51, 4096')
    a(f's_add_u32 s53, s53, 1\ns_cmp_lg_u32 s53, {PRE}\ns_cbranch_scc1 L_knb')
    a('buffer_store_dwordx4 v[4:7], v3, s[36:39], s54 offen sc1')
    a('s_barrier\nL_knb:')
    a('s_cmp_lt_u32 s53, s33\ns_cbranch_scc1 L_kloop')
    signal(C_KISS, 'v8', 'v9')
    ts(1)
    a('v_lshrrev_b32 v2, 4, v1\nv_and_b32 v10, 15, v1\nv_lshlrev_b32 v10, 4, v10')
    a(f'v_mul_u32_u24 v1, 272, v2\nv_add_u32 v1, v1, v10\nv_add_u32 v1, {L_P}, v1')
    a('v_lshl_add_u32 v2, v2, 9, v10\ns_lshl_b32 s48, s3, 8\ns_add_u32 s50, s50, s48')
    a('v_mov_b32 v4, 0\nv_mov_b32 v5, 0\nv_mov_b32 v6, 0\nv_mov_b32 v7, 0')
    a('s_cmp_eq_u32 s33, 6\ns_cbranch_scc1 L_vi12\ns_cmp_eq_u32 s33, 8\ns_cbranch_scc1 L_vi4')
    VB = 24
    for i in range(36):
        if i in (4, 12): a(f'L_vi{i}:')
        a(f's_waitcnt vmcnt({WIN-1})')
        for (ent, t) in ((0, 9), (4, 8), (12, 6)):
            if i == ent + WIN - 1:
                l = lab('ks')
                a(f's_cmp_lg_u32 s33, {t}\ns_cbranch_scc1 {l}')
                a(f's_mov_b64 exec, 1\nds_add_u32 v8, v9 offset:{C_KRDY}\ns_mov_b64 exec, -1')
                ts(2)
                a(f'{l}:')
        a(f'buffer_load_dwordx4 v[{VB+4*i}:{VB+4*i+3}], v2, s[44:47], s50 offen offset:{(i&1)*2048} {NT}')
        if i & 1 and i < 35: a('s_add_u32 s50, s50, 4096')
    a(f's_mov_b64 exec, 1\nds_add_u32 v8, v9 offset:{C_VISS}\ns_mov_b64 exec, -1')
    ts(3)
    spin_lds(C_P, 's33', 'v10', 'v8')
    ts(4)
    a('s_sub_u32 s48, 9, s33\ns_mul_i32 s48, s48, 4352\nv_add_u32 v2, s48, v1')
    for k in range(3): a(f'ds_read_b128 v[{8+4*k}:{11+4*k}], v2 offset:{k*1088}')
    a('s_cmp_eq_u32 s33, 6\ns_cbranch_scc1 L_pv12\ns_cmp_eq_u32 s33, 8\ns_cbranch_scc1 L_pv4')
    for i in range(36):
        if i in (4, 12): a(f'L_pv{i}:')
        if i + 3 < 36:
            k = (i + 3) & 3
            a(f'ds_read_b128 v[{8+4*k}:{11+4*k}], v1 offset:{(i+3)*1088}')
        lg = min(3, 35 - i)
        if 35 - i < WIN: a(f's_waitcnt vmcnt({35-i}) lgkmcnt({lg})')
        else: a(f's_waitcnt lgkmcnt({lg})')
        k = i & 3
        a(f'v_mfma_f32_16x16x32_bf16 v[4:7], v[{8+4*k}:{11+4*k}], v[{VB+4*i}:{VB+4*i+3}], v[4:7]')
    a('buffer_store_dwordx4 v[4:7], v3, s[36:39], s54 offen sc1')
    ts(5)
    a('s_branch L_end')

    RAW, BOP, AOP, DD = 32, 64, 16, 96
    a('L_aux:')
    a('s_sub_u32 s35, s3, 2')
    a('v_and_b32 v8, 15, v1\nv_lshrrev_b32 v9, 4, v1')
    a('s_mov_b32 s55, 0')
    a('s_cmp_ge_u32 s32, 8\ns_cbranch_scc1 L_notS1')
    a('s_cmp_ge_u32 s35, 7\ns_cbranch_scc1 L_front_done')
    a('s_mov_b32 s55, 1\ns_movk_i32 s48, 0x2000\ns_mov_b32 s42, 0x380000')
    a('s_lshl_b32 s49, s31, 3\ns_add_u32 s49, s49, s32\ns_lshl_b32 s49, s49, 7\ns_lshl_b32 s50, s35, 19\ns_add_u32 s49, s49, s50')
    a('s_waitcnt lgkmcnt(0)\ns_mov_b64 s[40:41], s[10:11]\ns_branch L_front_load')
    a('L_notS1:')
    a('s_cmp_ge_u32 s32, 16\ns_cselect_b32 s48, 1, 3\ns_cmp_ge_u32 s35, s48\ns_cbranch_scc1 L_front_done')
    a('s_mul_i32 s48, s32, 3\ns_add_u32 s48, s48, s35\ns_sub_u32 s48, s48, 24\ns_add_u32 s49, s32, 8')
    a('s_cmp_ge_u32 s32, 16\ns_cselect_b32 s48, s49, s48\ns_mul_i32 s49, s31, 40\ns_add_u32 s51, s48, s49')
    a('s_cmp_ge_u32 s51, 294\ns_cbranch_scc1 L_front_done')
    a('s_mul_i32 s52, s51, 9363\ns_lshr_b32 s52, s52, 16\ns_mul_i32 s53, s52, 7\ns_sub_u32 s53, s51, s53')
    a('s_mov_b32 s55, 2\ns_movk_i32 s48, 5376\ns_mov_b32 s42, 0x24c000')
    a(f's_mul_i32 s49, s53, {64*5376}\ns_lshl_b32 s50, s52, 7\ns_add_u32 s49, s49, s50')
    a('s_lshl_b32 s50, s53, 7\nv_lshl_add_u32 v2, v1, 1, s50')
    a('s_waitcnt lgkmcnt(0)\ns_mov_b64 s[40:41], s[22:23]\ns_mov_b64 s[36:37], s[28:29]')
    a('global_load_ushort v10, v2, s[20:21]')
    a('s_cmp_ge_u32 s51, 77\ns_cbranch_scc1 L_front_load')
    a(f'v_mov_b32 v4, -1\nv_mov_b32 v5, -1\nv_mov_b32 v6, -1\nv_mov_b32 v7, -1\nv_lshlrev_b32 v3, 4, v1\ns_lshl_b32 s50, s51, 10\ns_add_u32 s50, s50, {WS_T2}')
    a('buffer_store_dwordx4 v[4:7], v3, s[36:39], s50 offen sc1')
    a('L_front_load:')
    a('s_lshl_b32 s50, s48, 3\nv_mul_u32_u24 v2, s50, v9\nv_lshl_add_u32 v2, v8, 3, v2\ns_mul_i32 s50, s48, 25')
    loads64(RAW, 16, 's[40:43]', 'v2', 's49', lambda i: 's50' if i == 7 else 's48')
    a('L_front_done:')
    a('s_waitcnt lgkmcnt(0)')
    if TS: a('v_writelane_b32 v0, s98, 0')
    a('s_mov_b64 s[36:37], s[28:29]')
    a('s_cmp_lg_u32 s35, 8\ns_cbranch_scc1 L_noinit')
    a('v_mov_b32 v3, 0\ns_mov_b64 exec, 1\nbuffer_load_dword v4, v3, s[36:39], 0 offen sc1\ns_mov_b64 exec, -1')
    a('s_cmp_lg_u32 s32, 0\ns_cbranch_scc1 L_nopf')
    a('s_getpc_b64 s[48:49]\nL_pc:\nv_lshlrev_b32 v2, 7, v1')
    a(f's_sub_u32 s48, s48, L_pc-{KN}\ns_subb_u32 s49, s49, 0')
    a(f'global_load_dword v160, v2, s[48:49]')
    a(f'v_add_u32 v2, 0x2000, v2\nv_cmp_gt_u32 vcc, L_last-{KN}, v2\ns_and_b64 exec, exec, vcc\nglobal_load_dword v161, v2, s[48:49]\ns_mov_b64 exec, -1')
    a('s_waitcnt vmcnt(2)\ns_branch L_pfd\nL_nopf:\ns_waitcnt vmcnt(0)\nL_pfd:')
    a('v_readfirstlane_b32 s30, v4\ns_mov_b32 s49, 0xff800000\nv_lshlrev_b32 v2, 2, v1\nv_writelane_b32 v3, s49, 8\nv_writelane_b32 v3, s49, 9')
    a('s_and_b32 s48, s30, 0x7f7f7f7f\ns_add_u32 s48, s48, 0x01010101\ns_and_b32 s30, s30, 0x80808080\ns_xor_b32 s30, s30, s48')
    a('v_writelane_b32 v3, s30, 10\nds_write_b32 v2, v3\ns_waitcnt lgkmcnt(0)')
    a('L_noinit:')
    a('s_barrier')
    a('s_mov_b32 s56, 0x05040100\ns_mov_b32 s57, 0x07060302')
    a(f's_lshl_b32 s54, s35, 7\ns_add_u32 s54, s54, {L_STG}')
    a('v_lshl_add_u32 v11, v9, 4, s54')
    a(f's_mul_i32 s48, s35, 4352\ns_add_u32 s48, s48, {L_P}\nv_mul_u32_u24 v2, 272, v9\nv_lshl_add_u32 v2, v8, 4, v2\nv_add_u32 v2, s48, v2')
    a('v_mov_b32 v12, 0\nv_mov_b32 v13, 0\nv_mov_b32 v14, 0\nv_mov_b32 v15, 0')
    a('ds_read_b32 v3, v12 offset:40')
    for k in range(4): a(f'ds_write_b128 v2, v[12:15] offset:{k*1088}')
    a('s_waitcnt lgkmcnt(4)\nv_readfirstlane_b32 s30, v3')
    a('s_cmp_eq_u32 s55, 0\ns_cbranch_scc1 L_comb')
    a('s_cmp_eq_u32 s55, 1\ns_cbranch_scc1 L_perm')
    a('s_waitcnt vmcnt(16)')
    a(f'v_lshlrev_b32 v10, 16, v10\nv_mul_f32 v2, {LOG2E | 0x80000000:#x}, v10\nv_exp_f32 v2, v2\nv_add_f32 v2, 1.0, v2\nv_rcp_f32 v2, v2\nv_mul_f32 v2, v10, v2')
    a('v_cvt_pk_bf16_f32 v2, v2, v2\nv_lshl_add_u32 v3, v1, 1, s54\nds_write_b16 v3, v2')
    a(f'ds_read_b128 v[{AOP}:{AOP+3}], v11\nds_read_b128 v[{AOP+4}:{AOP+7}], v11 offset:64')
    a('L_perm:')
    perms(BOP, RAW, 2, waits=lambda s, r: 14 - 8 * s - 2 * r)
    ts(1)
    a('s_cmp_eq_u32 s55, 2\ns_cbranch_scc1 L_fmm')
    a(f's_lshl_b32 s48, s35, 12\ns_add_u32 s48, s48, {WS_H}')
    poll_pk('s48', AOP, 's31')
    ts(2)
    a('L_fmm:\ns_waitcnt lgkmcnt(0)')
    gemv(DD, AOP, BOP, 2)
    a('s_cmp_eq_u32 s55, 1\ns_cbranch_scc1 L_s1e')
    a(f's_lshl_b32 s48, s51, 9\ns_add_u32 s48, s48, {WS_MODP}\nv_mov_b32 v{DD+1}, s30\nv_lshlrev_b32 v2, 3, v1')
    a(f'buffer_store_dwordx2 v[{DD}:{DD+1}], v2, s[36:39], s48 offen sc1')
    ts(3)
    a('s_branch L_qfetch')
    a('L_s1e:')
    a(f's_lshl_b32 s48, s35, 8\nv_lshlrev_b32 v12, 2, v1\nv_add_u32 v13, s48, v12\nds_write_b32 v13, v{DD} offset:{L_RED}')
    signal(C_S1, rtn='v4')
    a('s_waitcnt lgkmcnt(0)\nv_readfirstlane_b32 s48, v4\ns_cmp_lg_u32 s48, 6\ns_cbranch_scc1 L_qfetch')
    for k in range(7): a(f'ds_read_b32 v{16+k}, v12 offset:{L_RED + 256*k}')
    a(f's_lshl_b32 s48, s31, 3\ns_add_u32 s48, s48, s32\ns_lshl_b32 s48, s48, 12\ns_add_u32 s48, s48, {WS_Q}')
    a('s_waitcnt lgkmcnt(0)')
    a('v_add_f32 v16, v16, v17\nv_add_f32 v18, v18, v19\nv_add_f32 v20, v20, v21\nv_add_f32 v16, v16, v18\nv_add_f32 v20, v20, v22\nv_add_f32 v16, v16, v20')
    a('s_branch L_pub')
    a('L_comb:')
    a('s_cmp_lg_u32 s35, 3\ns_cbranch_scc1 L_qfetch\ns_cmp_lt_u32 s32, 16\ns_cbranch_scc1 L_qfetch')
    a('s_lshl_b32 s51, s31, 4\ns_add_u32 s51, s51, s32\ns_sub_u32 s51, s51, 16\ns_cmp_ge_u32 s51, 35\ns_cbranch_scc1 L_qfetch')
    a('v_lshlrev_b32 v2, 3, v1')
    a('s_cmp_lt_u32 s51, 7\ns_cbranch_scc1 L_urg')
    def poll_modp(n, offs):
        l = lab('mp')
        a(f's_mov_b32 s97, 0\n{l}:')
        for k in range(n):
            so, im = offs(k)
            a(f'buffer_load_dwordx2 v[{32+2*k}:{33+2*k}], v2, s[36:39], {so} offen offset:{im} sc1')
        a(f's_add_u32 s97, s97, 1\ns_cmp_ge_u32 s97, {CAP}\ns_cbranch_scc1 L_end')
        a('s_waitcnt vmcnt(0)')
        a('v_min3_u32 v3, v33, v35, v37\nv_max3_u32 v4, v33, v35, v37')
        rest = [33 + 2 * k for k in range(3, n)]
        while rest:
            x = rest[0]; y = rest[1] if len(rest) > 1 else rest[0]; rest = rest[2:]
            a(f'v_min3_u32 v3, v3, v{x}, v{y}\nv_max3_u32 v4, v4, v{x}, v{y}')
        a(f'v_cmp_ne_u32 vcc, s30, v3\nv_cmp_ne_u32 s[58:59], s30, v4\ns_or_b64 vcc, vcc, s[58:59]\ns_cbranch_vccnz {l}')
    def sum7(b):
        a(f'v_add_f32 v{b}, v{b}, v{b+2}\nv_add_f32 v{b+4}, v{b+4}, v{b+6}\nv_add_f32 v{b+8}, v{b+8}, v{b+10}')
        a(f'v_add_f32 v{b}, v{b}, v{b+4}\nv_add_f32 v{b+8}, v{b+8}, v{b+12}\nv_add_f32 v{b}, v{b}, v{b+8}')
        rnd(f'v{b}', f'v{b}')
    a(f's_mul_i32 s48, s51, 3584\ns_add_u32 s48, s48, {WS_MODP + 7*3584}')
    poll_modp(7, lambda k: ('s48', k * 512))
    sum7(32)
    a(f's_and_b32 s49, s30, 0xffff\nv_or_b32 v32, s49, v32\nv_lshlrev_b32 v2, 2, v1\ns_lshl_b32 s48, s51, 8\ns_add_u32 s48, s48, {WS_MODF - 7*256}')
    a('buffer_store_dword v32, v2, s[36:39], s48 offen sc1')
    ts(3)
    a('s_branch L_qfetch')
    a('L_urg:')
    a('v_lshl_add_u32 v3, v8, 2, v9\nv_lshlrev_b32 v3, 1, v3\ns_lshl_b32 s48, s51, 7\nv_add_u32 v4, s48, v3')
    for k in range(7): a(f'global_load_ushort v{16+k}, v3, s[4:5] offset:{128*k}')
    a('global_load_ushort v23, v4, s[4:5]')
    a('s_waitcnt vmcnt(0)')
    for k in range(8): a(f'v_lshlrev_b32 v{16+k}, 16, v{16+k}')
    def wave_sum(v):
        row_red('v_add_f32', v)
        a(f'v_mov_b32 v5, {v}\nv_permlane16_swap_b32 {v}, v5\nv_add_f32 {v}, {v}, v5')
        a(f'v_mov_b32 v5, {v}\nv_permlane32_swap_b32 {v}, v5\nv_add_f32 {v}, {v}, v5')
    a('v_add_f32 v24, v16, v17\nv_add_f32 v25, v18, v19\nv_add_f32 v26, v20, v21\nv_add_f32 v24, v24, v25\nv_add_f32 v26, v26, v22\nv_add_f32 v24, v24, v26')
    wave_sum('v24')
    INV448 = 0x3b124925
    a(f'v_mul_f32 v24, {INV448:#x}, v24')
    for k in range(7): a(f'v_sub_f32 v{16+k}, v{16+k}, v24')
    a('v_mul_f32 v25, v16, v16')
    for k in range(1, 7): a(f'v_fmac_f32 v25, v{16+k}, v{16+k}')
    wave_sum('v25')
    a(f'v_mul_f32 v25, {INV448:#x}, v25')
    def ln_tail(x, mean, var, out):
        rnd(var, var); rnd(mean, mean)
        a(f'v_add_f32 {var}, 0x3727c5ac, {var}\nv_sub_f32 {out}, {x}, {mean}')
        rnd(var, var); rnd(out, out)
        a(f'v_sqrt_f32 {var}, {var}'); rnd(var, var)
        a(f'v_rcp_f32 {var}, {var}\nv_mul_f32 {out}, {out}, {var}'); rnd(out, out)
    ln_tail('v23', 'v24', 'v25', 'v23')
    a(f's_mul_i32 s48, s51, 3584\ns_add_u32 s48, s48, {WS_MODP}\ns_add_u32 s49, s48, {7*3584}')
    ts(1)
    poll_modp(14, lambda k: ('s48' if k < 7 else 's49', (k % 7) * 512))
    ts(2)
    sum7(46); sum7(32)
    a('v_add_f32 v46, 1.0, v46'); rnd('v46', 'v46')
    a('v_mul_f32 v46, v23, v46'); rnd('v46', 'v46')
    a('v_add_f32 v16, v46, v32')
    a(f's_lshl_b32 s48, s51, 12\ns_add_u32 s48, s48, {WS_H}')
    a('L_pub:')
    publish_pk('v16', 's48')
    ts(3)
    a('L_qfetch:')
    a('s_cmp_ge_u32 s35, 8\ns_cbranch_scc1 L_qk')
    spin_lds(C_KISS, 2)
    ts(4)
    a(f's_lshl_b32 s48, s31, 3\ns_add_u32 s48, s48, s35\ns_lshl_b32 s48, s48, 12\ns_add_u32 s48, s48, {WS_Q}')
    poll_pk('s48', AOP, 's32')
    a(f's_lshr_b32 s48, s35, 2\ns_lshl_b32 s48, s48, 6\ns_lshl_b32 s49, s35, 7\ns_add_u32 s48, s48, s49\nv_lshl_add_u32 v2, v9, 4, s48')
    a('s_mov_b32 exec_lo, 0x10001\ns_mov_b32 exec_hi, 0x10001')
    a(f'ds_write_b128 v2, v[{AOP}:{AOP+3}] offset:{L_Q}\nds_write_b128 v2, v[{AOP+4}:{AOP+7}] offset:{L_Q+64}')
    a('s_mov_b64 exec, -1')
    signal(C_Q)
    ts(5)
    a('L_qk:')
    a('s_add_u32 s48, s35, s33\ns_cmp_lt_u32 s48, 9\ns_cbranch_scc1 L_tail')
    a('v_lshrrev_b32 v4, 3, v8\nv_mul_u32_u24 v4, 576, v4\nv_lshl_add_u32 v4, v9, 4, v4')
    a(f's_lshl_b32 s48, s35, 13\ns_add_u32 s48, s48, {L_K}\nv_xor_b32 v12, v8, v9\nv_lshlrev_b32 v12, 4, v12\nv_lshl_add_u32 v12, v8, 9, v12\nv_add_u32 v12, s48, v12')
    a('v_xor_b32 v13, 64, v12\nv_xor_b32 v14, 0x80, v12\nv_xor_b32 v15, 0xc0, v12')
    spin_lds(C_Q, 8)
    for s in range(8): a(f'ds_read_b128 v[{32+4*s}:{35+4*s}], v4 offset:{L_Q + 64*s}')
    spin_lds(C_KRDY, 2)
    ts(6)
    for s in range(8): a(f'ds_read_b128 v[{64+4*s}:{67+4*s}], v{12 + (s & 3)} offset:{(s >> 2) * 256}')
    for s in range(8):
        a(f's_waitcnt lgkmcnt({7-s})')
        a(f'v_mfma_f32_16x16x32_bf16 v[16:19], v[{32+4*s}:{35+4*s}], v[{64+4*s}:{67+4*s}], {"0" if s == 0 else "v[16:19]"}')
    a('v_lshrrev_b32 v6, 5, v1\nv_lshlrev_b32 v7, 2, v6')
    a(f's_mul_i32 s48, s35, 4352\ns_add_u32 s48, s48, {L_P}\nv_mul_u32_u24 v12, 272, v8\nv_lshl_add_u32 v12, v6, 7, v12\nv_and_b32 v13, 1, v9\nv_mul_u32_u24 v13, 72, v13\nv_add3_u32 v12, v12, v13, s48')
    rnd('v16', 'v16')
    a('v_mul_f32 v16, 0x3d800000, v16')
    a('v_max_f32_dpp v17, v16, v16 row_ror:8 row_mask:0xf bank_mask:0xf')
    for sh in (4, 2, 1): a(f'v_max_f32_dpp v17, v17, v17 row_ror:{sh} row_mask:0xf bank_mask:0xf')
    a(f's_mov_b32 exec_lo, 1\ns_mov_b32 exec_hi, 1\nds_max_f32 v7, v17 offset:{L_MX}\ns_mov_b64 exec, -1')
    signal(C_MX)
    spin_lds(C_MX, 's33')
    a(f'ds_read_b32 v17, v7 offset:{L_MX}\ns_lshl_b32 s48, s35, 2\nv_lshl_add_u32 v13, v6, 6, s48\ns_waitcnt lgkmcnt(0)')
    a(f'v_sub_f32 v16, v16, v17\nv_mul_f32 v16, {LOG2E:#x}, v16\nv_exp_f32 v16, v16')
    a('v_cvt_pk_bf16_f32 v18, v16, v16')
    for r in range(4): a(f'ds_write_b16 v12, v18 offset:{18*r}')
    row_red('v_add_f32', 'v16')
    a(f's_mov_b32 exec_lo, 1\ns_mov_b32 exec_hi, 1\nds_write_b32 v13, v16 offset:{L_LSUM}\ns_mov_b64 exec, -1')
    signal(C_P, rtn='v4')
    a('s_waitcnt lgkmcnt(0)\nv_readfirstlane_b32 s48, v4\ns_add_u32 s48, s48, 1')
    ts(7)
    a('s_cmp_lg_u32 s48, s33\ns_cbranch_scc1 L_tail')
    a(f'v_lshlrev_b32 v2, 2, v8\nv_lshl_add_u32 v2, v6, 6, v2\nds_read_b32 v21, v2 offset:{L_LSUM}')
    a('s_and_b32 s49, s30, 0xffff\nv_or_b32 v20, s49, v17\nv_mov_b32 v22, s30\nv_mov_b32 v23, 0')
    a(f'v_lshlrev_b32 v2, 9, v6\ns_lshl_b32 s48, s31, 10\ns_lshl_b32 s49, s32, 4\ns_add_u32 s48, s48, s49\ns_add_u32 s48, s48, {WS_ML}')
    a('s_waitcnt lgkmcnt(0)')
    row_red('v_add_f32', 'v21')
    a('s_mov_b32 exec_lo, 1\ns_mov_b32 exec_hi, 1\nbuffer_store_dwordx4 v[20:23], v2, s[36:39], s48 offen sc1\ns_mov_b64 exec, -1')
    a('L_tail:')
    a('s_cmp_ge_u32 s32, 14\ns_cbranch_scc1 L_ffn')
    a('s_cmp_ge_u32 s35, 8\ns_cbranch_scc1 L_end')
    a('s_cmp_ge_u32 s32, 7\ns_cselect_b32 s51, 1, 0\ns_mul_i32 s48, s51, 7\ns_sub_u32 s52, s32, s48')
    a('s_lshl_b32 s53, s31, 1\ns_add_u32 s53, s53, s51')
    a('s_lshr_b32 s48, s35, 2\ns_lshl_b32 s48, s48, 7\ns_and_b32 s49, s35, 1\ns_lshl_b32 s49, s49, 6\ns_add_u32 s48, s48, s49')
    a('s_and_b32 s49, s35, 2\ns_lshl_b32 s49, s49, 1\ns_add_u32 s48, s48, s49\ns_lshl_b32 s49, s53, 8\ns_add_u32 s48, s48, s49')
    a('s_mul_i32 s48, s48, 896\ns_lshl_b32 s49, s52, 7\ns_add_u32 s48, s48, s49')
    a(f'v_mul_u32_u24 v12, {16*896}, v9\nv_lshl_add_u32 v12, v8, 3, v12')
    a('s_mov_b64 s[40:41], s[12:13]\ns_mov_b32 s42, 0x380000')
    spin_lds(C_VISS, 2)
    loads64(RAW, 8, 's[40:43]', 'v12', 's48', lambda i: 5 * 896 if i == 3 else 896)
    ts(8)
    a(f'v_and_b32 v2, 31, v1\nv_lshlrev_b32 v2, 4, v2\ns_lshl_b32 s48, s53, 9\ns_add_u32 s48, s48, {WS_ML}\ns_and_b32 s49, s30, 0xffff')
    a('s_mov_b32 s97, 0\nL_mlp:')
    a('buffer_load_dwordx4 v[12:15], v2, s[36:39], s48 offen sc1')
    a(f's_add_u32 s97, s97, 1\ns_cmp_ge_u32 s97, {CAP}\ns_cbranch_scc1 L_end')
    a('s_waitcnt vmcnt(0)\nv_and_b32 v3, 0xffff, v12\nv_cmp_ne_u32 vcc, s30, v14\nv_cmp_ne_u32 s[58:59], s49, v3\ns_or_b64 vcc, vcc, s[58:59]\ns_cbranch_vccnz L_mlp')
    ts(9)
    a('v_and_b32 v12, 0xffff0000, v12')
    a('v_max_f32_dpp v14, v12, v12 row_ror:8 row_mask:0xf bank_mask:0xf')
    for sh in (4, 2, 1): a(f'v_max_f32_dpp v14, v14, v14 row_ror:{sh} row_mask:0xf bank_mask:0xf')
    a('v_mov_b32 v5, v14\nv_permlane16_swap_b32 v14, v5\nv_max_f32 v14, v14, v5')
    a(f'v_sub_f32 v12, v12, v14\nv_mul_f32 v12, {LOG2E:#x}, v12\nv_exp_f32 v12, v12\nv_mul_f32 v13, v13, v12')
    row_red('v_add_f32', 'v13')
    a('v_mov_b32 v5, v13\nv_permlane16_swap_b32 v13, v5\nv_add_f32 v13, v13, v5\nv_rcp_f32 v13, v13\nv_mul_f32 v12, v12, v13')
    a('v_lshrrev_b32 v2, 3, v1\nv_lshlrev_b32 v3, 2, v2')
    for i in range(4): a(f'ds_bpermute_b32 v{24+i}, v3, v12 offset:{32*i}')
    perms(BOP, RAW, 1)
    a('v_and_b32 v3, 7, v1\nv_lshlrev_b32 v2, 11, v2\nv_lshl_add_u32 v2, v3, 4, v2')
    a('v_lshl_add_u32 v3, v3, 2, v9\nv_lshl_add_u32 v3, v3, 1, s54')
    a(f's_lshl_b32 s48, s31, 16\ns_lshr_b32 s49, s35, 2\ns_lshl_b32 s49, s49, 10\ns_add_u32 s48, s48, s49\ns_lshl_b32 s49, s51, 9\ns_add_u32 s48, s48, s49')
    a(f's_and_b32 s49, s35, 3\ns_lshl_b32 s49, s49, 7\ns_add_u32 s48, s48, s49\ns_add_u32 s60, s48, {WS_O}')
    a('s_add_u32 s61, s60, 0x4000\ns_add_u32 s62, s60, 0x8000\ns_add_u32 s63, s60, 0xc000')
    a(f's_lshl_b32 s48, s35, 8\nv_lshlrev_b32 v6, 2, v1\nv_add_u32 v7, s48, v6')
    a(f's_lshl_b32 s48, s52, 12\ns_lshl_b32 s49, s53, 8\ns_add_u32 s48, s48, s49\ns_add_u32 s48, s48, {WS_T2}')
    a('s_waitcnt lgkmcnt(0)')
    ts(10)
    gather_sum(4, 32, 12, 'v2', None, wts=24, extra=lambda i: (f's{60+i}', 0))
    ts(11)
    a(f'v_cvt_pk_bf16_f32 v12, v12, v12\nds_write_b16 v3, v12\nds_read_b128 v[{AOP}:{AOP+3}], v11\ns_waitcnt lgkmcnt(0)')
    gemv(DD, AOP, BOP, 1)
    a(f'ds_write_b32 v7, v{DD} offset:{L_RED}\ns_waitcnt lgkmcnt(0)\ns_barrier')
    a('s_cmp_lg_u32 s35, 0\ns_cbranch_scc1 L_end')
    for k in range(4): a(f'ds_read2st64_b32 v[{16+2*k}:{17+2*k}], v6 offset0:{1+2*k} offset1:{2+2*k}')
    a('s_waitcnt lgkmcnt(2)\nv_pk_add_f32 v[16:17], v[16:17], v[18:19]\ns_waitcnt lgkmcnt(0)\nv_pk_add_f32 v[20:21], v[20:21], v[22:23]')
    a('v_pk_add_f32 v[16:17], v[16:17], v[20:21]\nv_add_f32 v16, v16, v17')
    a('buffer_store_dword v16, v6, s[36:39], s48 offen sc1')
    ts(12)
    a('s_branch L_end')
    a('L_ffn:')
    a('s_cmp_lt_u32 s32, 28\ns_cbranch_scc1 L_end\ns_cmp_ge_u32 s35, 7\ns_cbranch_scc1 L_end')
    a('s_sub_u32 s51, s2, 224\ns_cmp_ge_u32 s51, 28\ns_cbranch_scc1 L_end')
    RAW2, B2 = 112, 32
    a(f's_mul_i32 s48, s35, {64*3584}\ns_lshl_b32 s49, s51, 7\ns_add_u32 s48, s48, s49')
    a(f's_mul_i32 s49, s51, {64*896}\ns_lshl_b32 s50, s35, 7\ns_add_u32 s49, s49, s50')
    a(f'v_mul_u32_u24 v12, {8*3584}, v9\nv_lshl_add_u32 v12, v8, 3, v12\nv_mul_u32_u24 v13, {8*896}, v9\nv_lshl_add_u32 v13, v8, 3, v13')
    a('s_mov_b64 s[40:41], s[16:17]\ns_mov_b32 s42, 0x188000\ns_mov_b64 s[44:45], s[18:19]\ns_mov_b32 s46, 0x188000')
    a('v_lshl_add_u32 v14, v8, 2, v9\nv_and_b32 v15, 15, v14\nv_lshrrev_b32 v4, 4, v14\nv_lshl_add_u32 v15, v15, 2, v4')
    a('v_lshl_add_u32 v10, v15, 1, s50')
    a('global_load_ushort v24, v10, s[4:5]')
    a(f'v_lshlrev_b32 v4, 2, v14\ns_lshl_b32 s52, s35, 8\ns_add_u32 s52, s52, {WS_MODF}\ns_add_u32 s53, s52, 3584\ns_and_b32 s55, s30, 0xffff')
    a('s_mov_b32 s97, 0\nL_mfp:')
    for k in range(4): a(f'buffer_load_dword v{25+k}, v4, s[36:39], {"s52" if k < 2 else "s53"} offen offset:{(k&1)*1792} sc1')
    a(f's_add_u32 s97, s97, 1\ns_cmp_ge_u32 s97, {CAP}\ns_cbranch_scc1 L_end')
    a('s_waitcnt vmcnt(0)')
    for k in range(4): a(f'v_xor_b32 v{25+k}, s55, v{25+k}')
    a('v_or3_b32 v5, v25, v26, v27\nv_or_b32 v5, v5, v28\nv_and_b32 v5, 0xffff, v5\nv_cmp_ne_u32 vcc, 0, v5\ns_cbranch_vccnz L_mfp')
    a('v_lshlrev_b32 v24, 16, v24\nv_add_f32 v27, 1.0, v27'); rnd('v27', 'v27')
    spin_lds(C_VISS, 2)
    loads64(RAW, 16, 's[40:43]', 'v12', 's48', lambda i: 25 * 3584 if i == 7 else 3584)
    loads64(RAW2, 16, 's[44:47]', 'v13', 's49', lambda i: 25 * 896 if i == 7 else 896)
    ts(8)
    a('s_waitcnt vmcnt(16)')
    perms(BOP, RAW, 2)
    a('s_waitcnt vmcnt(0)')
    perms(B2, RAW2, 2)
    a('v_lshlrev_b32 v2, 4, v1\nv_lshl_add_u32 v3, v15, 1, s54\nv_lshl_add_u32 v29, v14, 1, s54')
    a(f's_lshl_b32 s48, s35, 12\ns_add_u32 s48, s48, {WS_T2}')
    a(f'v_lshrrev_b32 v30, 5, v1\nv_lshlrev_b32 v30, 5, v30\ns_lshl_b32 s49, s35, 2\nv_add_u32 v31, s49, v30')
    a(f's_lshl_b32 s49, s35, 8\nv_lshlrev_b32 v6, 2, v1\nv_add_u32 v7, s49, v6')
    a(f's_mul_i32 s52, s35, 7168\ns_add_u32 s52, s52, {WS_T3}\ns_lshl_b32 s49, s51, 8\ns_add_u32 s49, s49, s52\ns_add_u32 s53, s52, 4096')
    ts(10)
    gather_sum(4, 112, 12, 'v2', 's48')
    ts(11)
    rnd('v12', 'v12'); a('v_mul_f32 v12, v25, v12'); rnd('v12', 'v12'); a('v_add_f32 v12, v24, v12'); rnd('v24', 'v12')
    a('v_mov_b32 v12, v24\nv_mul_f32 v13, v24, v24\nv_permlane32_swap_b32 v12, v13\nv_add_f32 v12, v12, v13')
    row_red('v_add_f32', 'v12')
    a('v_add_f32_dpp v12, v12, v12 row_bcast:15 row_mask:0xa bank_mask:0xf')
    a(f's_mov_b32 exec_lo, 0x10000\ns_mov_b32 exec_hi, 0x10000\nds_write_b32 v31, v12 offset:{L_ST}\ns_mov_b64 exec, -1\ns_waitcnt lgkmcnt(0)\ns_barrier')
    a(f'ds_read_b128 v[12:15], v30 offset:{L_ST}\nds_read_b128 v[16:19], v30 offset:{L_ST+16}\ns_waitcnt lgkmcnt(0)')
    a('v_pk_add_f32 v[12:13], v[12:13], v[16:17]\nv_pk_add_f32 v[14:15], v[14:15], v[18:19]\nv_pk_add_f32 v[12:13], v[12:13], v[14:15]\nv_add_f32 v12, v12, v13')
    a(f'v_mul_f32 v12, {INV448:#x}, v12\nv_mov_b32 v13, v12\nv_permlane32_swap_b32 v12, v13')
    a('v_fma_f32 v13, -v12, v12, v13\nv_max_f32 v13, 0, v13')
    ln_tail('v24', 'v12', 'v13', 'v14')
    a('v_mul_f32 v14, v14, v27'); rnd('v14', 'v14'); a('v_add_f32 v14, v14, v26\nv_cvt_pk_bf16_f32 v14, v14, v14')
    a(f'ds_write_b16 v3, v14\nds_read_b128 v[{AOP}:{AOP+3}], v11\nds_read_b128 v[{AOP+4}:{AOP+7}], v11 offset:64\ns_waitcnt lgkmcnt(0)')
    gemv(DD, AOP, BOP, 2)
    a(f'ds_write_b32 v7, v{DD} offset:{L_RED}\ns_waitcnt lgkmcnt(0)\ns_barrier')
    for k in range(3): a(f'ds_read2st64_b32 v[{12+2*k}:{13+2*k}], v6 offset0:{1+2*k} offset1:{2+2*k}')
    a(f'ds_read_b32 v18, v6 offset:{L_RED+6*256}')
    a('s_waitcnt lgkmcnt(2)\nv_pk_add_f32 v[12:13], v[12:13], v[14:15]\ns_waitcnt lgkmcnt(0)\nv_add_f32 v16, v16, v18\nv_pk_add_f32 v[12:13], v[12:13], v[16:17]\nv_add_f32 v12, v12, v13')
    rnd('v12', 'v12')
    a(f'v_mul_f32 v13, {LOG2E | 0x80000000:#x}, v12\nv_exp_f32 v13, v13\nv_add_f32 v13, 1.0, v13\nv_rcp_f32 v13, v13\nv_mul_f32 v12, v12, v13\nv_cvt_pk_bf16_f32 v12, v12, v12')
    a(f'ds_write_b16 v29, v12\nds_read_b128 v[{AOP}:{AOP+3}], v11\nds_read_b128 v[{AOP+4}:{AOP+7}], v11 offset:64\ns_waitcnt lgkmcnt(0)')
    gemv(DD, AOP, B2, 2)
    a(f'buffer_store_dword v{DD}, v6, s[36:39], s49 offen sc1')
    ts(12)
    a('s_cmp_lg_u32 s51, s35\ns_cbranch_scc1 L_end')
    gather_sum(7, 112, 12, 'v2', None, extra=lambda i: ('s52' if i < 4 else 's53', (i & 3) * 1024))
    ts(13)
    rnd('v12', 'v12'); a('v_mul_f32 v12, v28, v12'); rnd('v12', 'v12'); a('v_add_f32 v12, v24, v12\nv_cvt_pk_bf16_f32 v12, v12, v12')
    a('global_store_short v10, v12, s[24:25]')
    a('s_cmp_lg_u32 s51, 0\ns_cbranch_scc1 L_end')
    a('v_mov_b32 v2, 0\nv_mov_b32 v3, s30\ns_mov_b64 exec, 1\nbuffer_store_dword v3, v2, s[36:39], 0 offen sc1')
    a('L_end:')
    if TS:
        a('s_mov_b64 exec, -1')
        ts(15)
        a(f's_mul_i32 s48, s2, 11\ns_add_u32 s48, s48, s3\ns_lshl_b32 s48, s48, 6\ns_add_u32 s48, s48, {WS_TS}')
        a('v_mbcnt_lo_u32_b32 v2, -1, 0\nv_lshlrev_b32 v2, 2, v2\ns_mov_b64 exec, 0xffff\nbuffer_store_dword v0, v2, s[36:39], s48 offen')
    a('L_exit:\ns_endpgm\nL_last:')
    a.L = hz.fix(a.L)
    a.tail(168, 100)
    t = a.text().replace('  .amdhsa_user_sgpr_count', '  .amdhsa_float_denorm_mode_32 3\n  .amdhsa_user_sgpr_count').replace('.amdhsa_user_sgpr_count 2', '.amdhsa_float_denorm_mode_32 3\n.amdhsa_user_sgpr_count 2')
    return t
if __name__ == '__main__':
    open('v1.s', 'w').write(gen())
    open('v1_ts.s', 'w').write(gen(TS=True))
```

```python
WS_TS = 0x200000
def probe(a, P, lab, NW=11):
    k, wlo, whi, op, jlo, jhi, gm = (0, 0, 1, 'min', 0, 32, 255) if P == 'base' else (tuple(P) + (255,))[:7]
    a(f's_cmp_eq_u32 s3, 0\ns_cbranch_scc1 L_pst\ns_cmp_eq_u32 s2, 253\ns_cbranch_scc1 L_pst\ns_sub_u32 s48, s3, {wlo}\ns_cmp_ge_u32 s48, {whi - wlo}\ns_cbranch_scc1 L_exit\ns_sub_u32 s48, s32, {jlo}\ns_cmp_ge_u32 s48, {jhi - jlo}\ns_cbranch_scc1 L_exit\nL_pst:')
    a(f's_mul_i32 s48, s2, {NW}\ns_add_u32 s48, s48, s3\ns_lshl_b32 s48, s48, 6\ns_add_u32 s48, s48, {WS_TS}')
    a('v_mbcnt_lo_u32_b32 v2, -1, 0\nv_mbcnt_hi_u32_b32 v2, -1, v2\nv_lshlrev_b32 v3, 2, v2\ns_mov_b64 exec, 0xffff\nbuffer_store_dword v0, v3, s[36:39], s48 offen sc1\ns_mov_b64 exec, -1')
    a('s_cmp_lg_u32 s2, 253\ns_cbranch_scc1 L_exit\ns_cmp_lg_u32 s3, 2\ns_cbranch_scc1 L_exit')
    a('v_readlane_b32 s50, v0, 0')
    def wait_until(sreg):
        l = lab('w')
        a(f's_mov_b32 s97, 0\n{l}:\ns_memrealtime s[98:99]\ns_add_u32 s97, s97, 1\ns_cmp_ge_u32 s97, 1000000\ns_cbranch_scc1 L_exit\ns_waitcnt lgkmcnt(0)\ns_sub_u32 s96, s98, {sreg}\ns_cmp_lt_i32 s96, 0\ns_cbranch_scc1 {l}')
    a('s_add_u32 s51, s50, 4000'); wait_until('s51')
    a('s_sub_u32 s52, s50, 1000\nv_mov_b32 v10, -1\nv_mov_b32 v12, 0\nv_mov_b32 v11, %s' % ('-1' if op == 'min' else '0'))
    a(f'v_mul_u32_u24 v3, {NW*64}, v2')
    for blk in range(4):
        mask = sum(1 << l for l in range(64) if jlo <= (blk * 64 + l) >> 3 < jhi and gm >> (l & 7) & 1)
        a(f's_mov_b32 s54, {mask & 0xffffffff}\ns_mov_b32 s55, {mask >> 32}\ns_mov_b32 s48, {WS_TS + blk * 64 * NW * 64}')
        a('buffer_load_dword v4, v3, s[36:39], s48 offen sc1\ns_waitcnt vmcnt(0)\nv_subrev_u32 v4, s52, v4\nv_min_u32 v10, v10, v4')
        if not mask: continue
        for w in range(wlo, whi): a(f'buffer_load_dword v{20+w}, v3, s[36:39], s48 offen offset:{w*64 + 4*k} sc1')
        a('s_waitcnt vmcnt(0)')
        for w in range(wlo, whi):
            a(f'v_subrev_u32 v5, s52, v{20+w}\nv_cmp_gt_u32 vcc, 0x4000, v5\ns_and_b64 exec, vcc, s[54:55]')
            a({'min': 'v_min_u32 v11, v11, v5', 'max': 'v_max_u32 v11, v11, v5', 'avg': 'v_add_u32 v11, v11, v5\nv_add_u32 v12, 1, v12'}[op])
            a('s_mov_b64 exec, -1')
    o = {'min': 'v_min_u32', 'max': 'v_max_u32', 'avg': 'v_add_u32'}[op]
    for (v, o) in (('v10', 'v_min_u32'), ('v11', o), ('v12', 'v_add_u32')):
        for sh in (8, 4, 2, 1): a(f'{o}_dpp {v}, {v}, {v} row_ror:{sh} row_mask:0xf bank_mask:0xf')
        a(f'v_mov_b32 v5, {v}\nv_permlane16_swap_b32 {v}, v5\n{o} {v}, {v}, v5\nv_mov_b32 v5, {v}\nv_permlane32_swap_b32 {v}, v5\n{o} {v}, {v}, v5')
    if op == 'avg': a('v_cvt_f32_u32 v11, v11\nv_cvt_f32_u32 v12, v12\nv_rcp_f32 v12, v12\nv_mul_f32 v11, v11, v12\nv_cvt_u32_f32 v11, v11')
    a('v_readfirstlane_b32 s53, v10\nv_readfirstlane_b32 s54, v11\ns_sub_u32 s54, s54, s53\ns_min_u32 s54, s54, 4000')
    a('s_add_u32 s51, s52, s53\ns_add_u32 s51, s51, 6000\ns_lshl_b32 s54, s54, 3\ns_add_u32 s51, s51, s54'); wait_until('s51')
```

```python
import sys
from asmlib import *
import hz
from probe2 import probe

WS_E = 0x0
WS_MOD = 0x1000
WS_H, WS_MODF = WS_MOD, WS_MOD + 14 * 256
WS_HELLO = 0x4000
WS_X1 = 0x5000
WS_ML = 0x9000
WS_T3, WS_T2 = 0x12000, 0x20000
WS_HR = 0x60000
WS_O = 0x80000
WS_Q = 0x100000
WS_TS = 0x200000
C_KISS, C_KRDY, C_Q, C_MX, C_P, C_ML, C_G, C_W = [4 * i for i in range(8)]
L_MX, L_H, C_O, C_D, C_M, C_R, C_QG = 32, 40, 44, 48, 52, 56, 60
C_V2, C_CL, C_C, C_HG = 192, 196, 200, 204
L_LSUM, L_ZERO, L_RED, L_STG, L_WT, L_Q, L_P, L_K = 64, 96, 256, 2304, 3328, 3456, 4608, 39424
L_WO = L_K + 65536
LDS_BYTES = L_WO + 57344
LOG2E = 0x3fb8aa3b
INV448 = 0x3b124925
STARTS = [128 * j for j in range(33)]
NW = 11

def gen(W1=11, W2=12, W3=16, N3=8, TS=False, NTS='nt', NTK=None, INV=0, NTW='', NTD='', R=16, SLQ=3, SLQ2=8, PROBE=None,
        AJ=4096, AG=2048, SKIPX=5, GW=2, T1D=4, MSK=False, HF=0, PRJ=32, HFS=2, HIT1=3, PRER=4, HIT=3, QSTEP=2, MLSTEP=22, OPT=16, ABL=0, FAST=True,
        HTRY=4, PD=2, GAP=5, GAP3=2, NC=1, OUTF='', WB=0, HR=0, HMODE=False, HGAP=8, HSL=32, HPRE=0, TSW=(0, 1, 3), OG=True, TPF=2, HG=C_O, NE=4, CNT=(3, 12, 1, 10, 3), WD=None, AL=12, G2=6, T1G=None, RING=7, KFIRST=True, T3M=2, PD3=4, PSL=0, TSK=None):
    PD3 = PD3 or PD
    WD = WD or W1
    NTK = NTS if NTK is None else NTK
    cS, cM, cW, cF, cR = CNT
    assert 16*cS + 4*cM + 28*cW + 8*cF + 8*cR >= 224
    if T1G is None: T1G = C_V2
    a = A()
    a.head(256, 64 * NW, LDS_BYTES)
    uid = [0]
    RAW, BOP, AOP, DD = 32, 64, 16, 96
    def lab(p):
        uid[0] += 1; return f'L_{p}{uid[0]}'
    def ts(k):
        if TS and (TSK is None or k in TSK) and (PROBE is None or (PROBE != 'base' and k == PROBE[0])): a(f's_memrealtime s[98:99]\ns_waitcnt lgkmcnt(0)\nv_writelane_b32 v0, s98, {k}')
    def cnt():
        if TS: a('v_writelane_b32 v0, s97, 14')
    def rnd(d, s): a(f'v_cvt_pk_bf16_f32 {d}, 0, {s}')
    def spin_lds(off, val, vt='v2', vz='v3'):
        l = lab('spin')
        a(f's_mov_b32 s97, 0\nv_mov_b32 {vz}, 0\n{l}:')
        a(f'ds_read_b32 {vt}, {vz} offset:{off}\ns_add_u32 s97, s97, 1\ns_bitcmp1_b32 s97, 20\ns_cbranch_scc1 L_end')
        a(f's_waitcnt lgkmcnt(0)\nv_cmp_ne_u32 vcc, {val}, {vt}\ns_cbranch_vccnz {l}')
    def cap(): a('s_add_u32 s97, s97, 1\ns_bitcmp1_b32 s97, 17\ns_cbranch_scc1 L_end')
    def signal(off, vz='v2', vo='v3', init=True):
        if init: a(f'v_mov_b32 {vz}, 0\nv_mov_b32 {vo}, 1')
        a(f's_mov_b64 exec, 1\nds_add_u32 {vz}, {vo} offset:{off}\ns_mov_b64 exec, -1')
    def row_red(op, v, src=None):
        for sh in (8, 4, 2, 1):
            s_ = src if (src and sh == 8) else v
            a(f'{op}_dpp {v}, {s_}, {s_} row_ror:{sh} row_mask:0xf bank_mask:0xf')
    def loads128(dst, srd, voff, soff, step, fl=''):
        for i in range(8):
            a(f'buffer_load_dwordx4 v[{dst+4*i}:{dst+4*i+3}], {voff}, {srd}, {soff} offen {fl}')
            if i < 7: a(f's_add_u32 {soff}, {soff}, {step}')
    def perms128(dst, src, waits=None):
        for r in range(4):
            if waits is not None: a(f's_waitcnt vmcnt({waits(r)})')
            for e in range(8):
                lo = src + 8 * r + (e >> 1); hi = lo + 4
                a(f'v_perm_b32 v{dst + 4*e + r}, v{hi}, v{lo}, {"s57" if e & 1 else "s56"}')
    def gemv128(D, B, rd=True):
        if rd: a(f'ds_read_b128 v[{AOP}:{AOP+3}], v11\nds_read_b128 v[{AOP+4}:{AOP+7}], v31')
        for s in range(2):
            a(f's_waitcnt lgkmcnt({1-s})')
            for e in range(4):
                c = '0' if s == 0 else f'v[{D+4*e}:{D+4*e+3}]'
                a(f'v_mfma_f32_16x16x32_bf16 v[{D+4*e}:{D+4*e+3}], v[{AOP+4*s}:{AOP+4*s+3}], v[{B+16*s+4*e}:{B+16*s+4*e+3}], {c}')
        a(f'v_permlane32_swap_b32 v{D}, v{D+8}\nv_permlane32_swap_b32 v{D+4}, v{D+12}')
        a(f'v_add_f32_dpp v{D}, v{D+8}, v{D} row_ror:8 row_mask:0xf bank_mask:0x3')
        a(f'v_add_f32_dpp v{D}, v{D+4}, v{D+12} row_ror:8 row_mask:0xf bank_mask:0xc')
    def red_scatter(x):
        a(f'v_permlane32_swap_b32 v{x}, v{x+2}\nv_permlane32_swap_b32 v{x+1}, v{x+3}')
        a(f'v_pk_add_f32 v[{x}:{x+1}], v[{x}:{x+1}], v[{x+2}:{x+3}]')
        a(f'v_permlane16_swap_b32 v{x}, v{x+1}\nv_add_f32 v{x}, v{x}, v{x+1}')
    def sum7(dst, t, addr):
        for k in range(3): a(f'ds_read2st64_b32 v[{t+2*k}:{t+2*k+1}], {addr} offset0:{1+2*k} offset1:{2+2*k}')
        a(f'ds_read_b32 v{t+6}, {addr} offset:{L_RED+6*256}')
        a(f's_waitcnt lgkmcnt(2)\nv_pk_add_f32 v[{t}:{t+1}], v[{t}:{t+1}], v[{t+2}:{t+3}]\ns_waitcnt lgkmcnt(0)\nv_add_f32 v{t+4}, v{t+4}, v{t+6}')
        a(f'v_pk_add_f32 v[{t}:{t+1}], v[{t}:{t+1}], v[{t+4}:{t+5}]\nv_add_f32 {dst}, v{t}, v{t+1}')
    def silu(d, x, t):
        a(f'v_mul_f32 {t}, {LOG2E | 0x80000000:#x}, {x}\nv_exp_f32 {t}, {t}\nv_add_f32 {t}, 1.0, {t}\nv_rcp_f32 {t}, {t}\nv_mul_f32 {d}, {x}, {t}')
    def ln_tail(x, mean, var, out):
        rnd(var, var); rnd(mean, mean)
        a(f'v_add_f32 {var}, 0x3727c5ac, {var}\nv_sub_f32 {out}, {x}, {mean}')
        rnd(var, var); rnd(out, out)
        a(f'v_sqrt_f32 {var}, {var}'); rnd(var, var)
        a(f'v_rcp_f32 {var}, {var}\nv_mul_f32 {out}, {out}, {var}'); rnd(out, out)
    def get_h():
        a(f'v_mov_b32 v3, 0\nds_read_b32 v3, v3 offset:{L_H}\ns_waitcnt lgkmcnt(0)\nv_readfirstlane_b32 s30, v3\ns_and_b32 s34, s30, 0xffff')
    def get_mode(vt='v2', vz='v3', C_M=C_M):
        l = lab('gm')
        a(f's_mov_b32 s97, 0\nv_mov_b32 {vz}, 0\n{l}:\nds_read_b32 {vt}, {vz} offset:{C_M}\ns_add_u32 s97, s97, 1\ns_bitcmp1_b32 s97, 20\ns_cbranch_scc1 L_end')
        a(f's_waitcnt lgkmcnt(0)\nv_readfirstlane_b32 s96, {vt}\ns_cmp_eq_u32 s96, 0\ns_cbranch_scc1 {l}')
    slow = []
    def store_mode(stores, cmp=True):
        l = lab('sm')
        if cmp: a('s_cmp_eq_u32 s96, 2')
        a(f's_cbranch_scc0 {l}s')
        for x in stores: a(x)
        a(f'{l}d:')
        slow.append(f'{l}s:\n' + '\n'.join(x + ' sc1' if x.startswith('buffer') else x for x in stores) + f'\ns_branch {l}d')
    def poll_tag(loads, regs, tmp, depth=1):
        l = lab('pt'); n = len(loads)
        if ABL & 0x400:
            for i in range(len(regs)): a(f'v_mov_b32 v{tmp+i}, 0')
            a('s_waitcnt vmcnt(0)'); return
        a('s_mov_b32 s97, 0')
        for d in range(depth - 1):
            for x in loads: a(x)
            a('s_sleep 1')
        a(f'{l}:')
        for x in loads: a(x)
        cap()
        a(f's_waitcnt vmcnt({(depth-1)*n})')
        for i, r in enumerate(regs): a(f'v_xor_b32 v{tmp+i}, s34, v{r}')
        t = [tmp + i for i in range(len(regs))]; acc = tmp + len(regs)
        if len(t) == 2: a(f'v_or_b32 v{acc}, v{t[0]}, v{t[1]}')
        else: a(f'v_or3_b32 v{acc}, v{t[0]}, v{t[1]}, v{t[2]}')
        a(f'v_cmp_ne_u16 vcc, 0, v{acc}\ns_cbranch_vccnz {l}')
        cnt()
    def gather_tag(src, acc, voff, addrs, mask=None, PD=PD, GAP=GAP, msk=False):
        l = lab('g'); n = len(addrs)
        def ld(k):
            for i, (so, im) in enumerate(addrs):
                x = src + 2 * n * k + 2 * i; m = mask is not None and i == n - 1
                if m: a(f's_mov_b32 exec_hi, {mask:#x}')
                if msk: a(f's_or_b64 exec, s[{64+2*i}:{65+2*i}], 1')
                a(f'v_mov_b64 v[{x}:{x+1}], 0\nbuffer_atomic_add_x2 v[{x}:{x+1}], {voff}, s[36:39], {so} offen offset:{im} sc0 sc1')
                if m: a('s_mov_b32 exec_hi, -1')
        if mask is not None:
            for k in range(PD): a(f'v_mov_b64 v[{src+2*n*k+2*(n-1)}:{src+2*n*k+2*n-1}], v[28:29]')
        a('s_mov_b32 s97, 0')
        if msk:
            for i in range(n): a(f's_mov_b64 s[{64+2*i}:{65+2*i}], -1')
        for d in range(PD):
            ld(d)
            if d < PD - 1: a(f's_sleep {GAP}')
        a(f'{l}:')
        o = acc + 2 * n
        for k in range(PD):
            a(f's_waitcnt vmcnt({n*(PD-1)})')
            if msk:
                for i in range(n):
                    a(f's_mov_b64 exec, s[{64+2*i}:{65+2*i}]')
                    for r in (2 * i, 2 * i + 1): a(f'v_xor_b32 v{acc+r}, v{28+(r&1)}, v{src+2*n*k+r}')
                    a(f'v_or_b32 v{o}, v{acc+2*i}, v{acc+2*i+1}\nv_cmp_ne_u32_sdwa s[{64+2*i}:{65+2*i}], v{o}, 0 src0_sel:BYTE_0 src1_sel:DWORD')
                a(f's_or_b64 s[72:73], s[64:65], s[66:67]\ns_or_b64 s[72:73], s[72:73], s[68:69]\ns_or_b64 s[72:73], s[72:73], s[70:71]\ns_cbranch_scc0 {l}d')
                for i in range(n): a(f's_wqm_b64 s[{64+2*i}:{65+2*i}], s[{64+2*i}:{65+2*i}]')
            else:
                for r in range(2 * n): a(f'v_xor_b32 v{acc+r}, v{28+(r&1)}, v{src+2*n*k+r}')
                a(f'v_or3_b32 v{o}, v{acc}, v{acc+1}, v{acc+2}\nv_or3_b32 v{o+1}, v{acc+3}, v{acc+4}, v{acc+5}')
                for t, r in enumerate(range(6, 2 * n, 2)): a(f'v_or3_b32 v{o+(t&1)}, v{o+(t&1)}, v{acc+r}, v{acc+r+1}')
                a(f'v_or_b32 v{o}, v{o}, v{o+1}')
                a(f'v_cmp_ne_u32_sdwa vcc, v{o}, 0 src0_sel:BYTE_0 src1_sel:DWORD\ns_cbranch_vccz {l}d')
            ld(k)
        cap()
        a(f's_branch {l}\n{l}d:')
        if msk: a('s_mov_b64 exec, -1')
        st = 1
        while st < n:
            for i in range(0, n - st, 2 * st): a(f'v_pk_add_f32 v[{acc+2*i}:{acc+2*i+1}], v[{acc+2*i}:{acc+2*i+1}], v[{acc+2*(i+st)}:{acc+2*(i+st)+1}]')
            st *= 2
        a(f'v_permlane32_swap_b32 v{acc}, v{acc+1}\nv_add_f32 v{acc+1}, v{acc}, v{acc+1}\nv_mov_b32 v{acc}, v{acc+1}')
        a(f'v_permlane16_swap_b32 v{acc}, v{acc+1}\nv_add_f32 v{acc}, v{acc}, v{acc+1}')
        cnt()
    def tagreg(d, col4):
        a(f'v_lshlrev_b32 {d}, 1, {col4}\nv_bfe_u32 {d}, s30, {d}, 8\ns_mov_b32 s55, 0xffffff00')

    a('s_load_dwordx16 s[4:19], s[0:1], 0\ns_load_dwordx8 s[20:27], s[0:1], 64\ns_load_dwordx2 s[28:29], s[0:1], 96')
    if TS: a('s_memrealtime s[98:99]')
    a('s_cmp_ge_u32 s2, 16\ns_cbranch_scc1 L_npf')
    if INV: a(['', 'buffer_inv sc1', 'buffer_inv sc0 sc1'][INV])
    a('s_getpc_b64 s[48:49]\nL_pc:\nv_lshlrev_b32 v2, 7, v0\nv_cmp_gt_u32 vcc, L_last-L_pc, v2\ns_and_b64 exec, exec, vcc\ns_cbranch_execz L_npf2')
    a('global_load_dword v14, v2, s[48:49]\nL_npf2:\ns_mov_b64 exec, -1\nL_npf:')
    a('s_cmp_ge_u32 s2, 256\ns_cbranch_scc1 L_exit')
    a('v_lshrrev_b32 v2, 6, v0\nv_and_b32 v1, 63, v0')
    a('s_and_b32 s31, s2, 7\ns_lshr_b32 s32, s2, 3')
    a('v_readfirstlane_b32 s3, v2')
    a(f's_cmp_gt_u32 s31, {SKIPX}\ns_subb_u32 s33, s31, 0\ns_cmp_eq_u32 s31, {SKIPX}\ns_cselect_b32 s33, 7, s33\ns_cselect_b32 s48, 8, 10\ns_cselect_b32 s42, 0, 0x24c000')
    a('s_cselect_b32 s49, 32, 28\ns_cmp_lt_u32 s32, s48\ns_cselect_b32 s58, 2, 0\ns_cmp_lt_u32 s32, 8\ns_cselect_b32 s58, 1, s58\ns_cmp_ge_u32 s32, s49\ns_cselect_b32 s58, 3, s58')
    a('s_mov_b32 s38, 0x400000\ns_mov_b32 s39, 0x20000\ns_mov_b32 s43, 0x20000\ns_mov_b32 s47, 0x20000\ns_mov_b32 s46, 0x380000')
    a('v_and_b32 v8, 15, v1\nv_lshrrev_b32 v9, 4, v1')
    a('s_cmp_ge_u32 s3, 2\ns_cbranch_scc1 L_aux')
    a('v_lshlrev_b32 v3, 4, v1\nv_mul_u32_u24 v2, 5376, v9\nv_lshl_add_u32 v2, v8, 4, v2')
    a('s_lshl_b32 s51, s32, 1\ns_add_u32 s51, s51, s3\ns_sub_u32 s50, s51, 4\ns_cmp_lt_u32 s32, 8\ns_cselect_b32 s50, s51, s50')
    a(f's_mul_i32 s52, s50, {4*5376}\ns_lshl_b32 s48, s33, 8\ns_add_u32 s52, s52, s48\ns_add_u32 s54, s52, {240*5376}')
    a(f's_lshl_b32 s53, s50, 13\ns_lshl_b32 s48, s31, 10\ns_add_u32 s53, s53, s48\ns_mov_b32 s49, {60*8192}\ns_lshr_b32 s48, s32, 1')
    a('s_waitcnt lgkmcnt(0)')
    a('s_mov_b64 s[40:41], s[22:23]\ns_mov_b64 s[44:45], s[10:11]\ns_cmp_eq_u32 s48, 4\ns_cbranch_scc1 L_s1m')
    a('buffer_load_dwordx4 v[16:19], v2, s[40:43], s52 offen\nbuffer_load_dwordx4 v[16:19], v2, s[40:43], s54 offen')
    for i in range(8):
        a('buffer_load_dwordx4 v[16:19], v3, s[44:47], s53 offen')
        if i < 7: a('s_add_u32 s53, s53, s49')
    a('s_branch L_s2')
    a('L_s1m:\nv_min_u32 v2, 0x370, v3\nglobal_load_dword v16, v2, s[20:21]\nglobal_load_dword v16, v2, s[4:5]\ns_branch L_s2')
    a('L_aux:\nv_mov_b32 v30, 0\nv_lshlrev_b32 v27, 2, v1')
    a('s_sub_u32 s35, s3, 3\ns_lshl_b32 s52, s33, 1\ns_add_u32 s52, s52, s32\ns_sub_u32 s52, s52, 8')
    a('s_waitcnt lgkmcnt(0)')
    if TS: a('v_writelane_b32 v0, s98, 0')
    a('s_mov_b64 s[36:37], s[28:29]')
    a('s_cmp_lg_u32 s3, 2\ns_cbranch_scc1 L_a1\ns_mov_b64 exec, 1\nbuffer_load_dword v17, v30, s[36:39], 0 offen sc1\ns_mov_b64 exec, -1\ns_branch L_svc')
    a('L_a1:\ns_cmp_eq_u32 s35, 7\ns_cbranch_scc1 L_finx')
    a('s_cmp_lg_u32 s58, 2\ns_cbranch_scc1 L_gdone')
    a('L_gmod:')
    a('s_lshl_b32 s50, s35, 7\nv_lshl_add_u32 v2, v1, 1, s50\nglobal_load_ushort v10, v2, s[20:21]')
    a('s_movk_i32 s48, 5376\ns_mov_b32 s42, 0x24c000\ns_mov_b64 s[40:41], s[22:23]')
    a(f's_mul_i32 s49, s35, {64*5376}\ns_lshl_b32 s50, s52, 7\ns_add_u32 s49, s49, s50')
    a('L_gload:')
    a('s_lshl_b32 s50, s48, 3\nv_lshrrev_b32 v2, 3, v1\nv_mul_u32_u24 v2, s50, v2\nv_and_b32 v3, 7, v1\nv_lshl_add_u32 v2, v3, 4, v2')
    loads128(RAW, 's[40:43]', 'v2', 's49', 's48')
    a('s_cmp_lg_u32 s58, 2\ns_cbranch_scc1 L_grel\ns_branch L_gdone')
    a('L_s2:')
    if TS: a('v_writelane_b32 v0, s98, 0')
    ts(7)
    oW, oM = 0, 28 * cW; oS = oM + 4 * cM; oF = oS + 16 * cS; oR = oF + 8 * cF
    a('s_sub_u32 s68, s32, 10\ns_cmp_lt_u32 s68, 14\ns_cselect_b32 s70, 16, 0\ns_cmp_ge_u32 s68, 7\ns_cselect_b32 s49, 1, 0\ns_mul_i32 s48, s49, 7\ns_sub_u32 s68, s68, s48')
    a(f's_lshl_b32 s48, s31, 1\ns_add_u32 s48, s48, s49\ns_lshl_b32 s48, s48, 5\ns_movk_i32 s69, 896')
    a(f's_mov_b64 s[64:65], s[12:13]\ns_mov_b32 s66, {0 if ABL & 1 else 0x380000}\ns_mov_b32 s67, 0x20000\ns_lshr_b32 s49, s32, 2\ns_cmp_lg_u32 s49, 6\ns_cbranch_scc1 L_dm2')
    a(f's_lshl_b32 s68, s33, 2\ns_add_u32 s68, s68, s32\ns_sub_u32 s68, s68, 24\ns_mov_b32 s48, 0\ns_movk_i32 s69, 3584')
    a(f's_mov_b64 s[64:65], s[16:17]\ns_mov_b32 s66, {0 if ABL & 64 else 0x188000}\ns_cmp_lt_u32 s33, 7\ns_cselect_b32 s70, {NE}, 0')
    a('L_dm2:\ns_add_u32 s48, s48, s3\ns_mul_i32 s48, s48, s69\ns_lshl_b32 s48, s48, 3\ns_lshl_b32 s68, s68, 7\ns_add_u32 s68, s68, s48')
    a('v_lshrrev_b32 v21, 3, v1\nv_mul_u32_u24 v21, s69, v21\nv_and_b32 v2, 7, v1\nv_lshl_add_u32 v21, v2, 4, v21\ns_lshl_b32 s69, s69, 4')
    a(f's_lshl_b32 s71, s3, 10\ns_add_u32 m0, s71, {L_WO}')
    a(f's_movk_i32 s61, {oS}\ns_mov_b32 s62, {cS}\ns_cmp_ge_u32 s32, 8\ns_cselect_b32 s60, 4, 16\ns_cselect_b32 s61, {oM - 16}, s61\ns_cselect_b32 s62, {cM}, s62')
    a(f's_cmp_ge_u32 s32, 10\ns_cselect_b32 s60, 28, s60\ns_cselect_b32 s61, {oW - 20}, s61\ns_cselect_b32 s62, {cW}, s62')
    a(f's_cmp_ge_u32 s32, 24\ns_cselect_b32 s60, 8, s60\ns_cselect_b32 s61, {oF - 48}, s61\ns_cselect_b32 s62, {cF}, s62')
    a(f's_cmp_ge_u32 s32, 28\ns_cselect_b32 s61, {oR - 56}, s61\ns_cselect_b32 s62, {cR}, s62\ns_cmp_eq_u32 s33, 7\ns_cselect_b32 s62, 0, s62')
    a(f's_add_u32 s61, s61, s51\ns_mul_i32 s52, s61, {2*5376}\ns_lshl_b32 s48, s33, 9\ns_add_u32 s52, s52, s48\ns_add_u32 s52, s52, 1792\ns_mul_i32 s60, s60, {2*5376}')
    a('v_lshrrev_b32 v2, 5, v1\nv_and_b32 v10, 31, v1\ns_lshl_b32 s48, s3, 1\nv_mul_u32_u24 v20, 5376, v2\nv_lshl_add_u32 v20, v10, 4, v20')
    a('v_xor_b32 v10, v2, v10\nv_xor_b32 v10, s48, v10\nv_lshlrev_b32 v2, 9, v2\nv_lshl_add_u32 v10, v10, 4, v2\nv_add_u32 v10, s71, v10')
    a('v_xor_b32 v11, 64, v10\nv_xor_b32 v12, 0x80, v10\nv_xor_b32 v13, 0xc0, v10')
    a(f's_lshl_b32 s54, s31, 6\ns_add_u32 s54, s54, s51\ns_lshl_b32 s54, s54, 10\ns_add_u32 s54, s54, {WS_O}\ns_mov_b64 s[36:37], s[28:29]')
    a('s_lshl_b32 s50, s31, 25\ns_lshl_b32 s49, s32, 16\ns_add_u32 s50, s50, s49\ns_add_u32 s50, s50, 0x1e00000')
    a('s_add_u32 s72, s6, s50\ns_addc_u32 s73, s7, 0\ns_add_u32 s44, s8, s50\ns_addc_u32 s45, s9, 0\ns_mov_b32 s74, 0x10000\ns_mov_b32 s75, 0x20000\ns_mov_b32 s46, 0x10000')
    a(f's_mul_i32 s51, s32, {AJ}\ns_mul_i32 s49, s31, {AG}\ns_add_u32 s51, s51, s49\ns_mov_b32 s59, 0xffff\ns_and_b32 s51, s51, s59\ns_mov_b32 s53, 0')
    a(f's_cmp_eq_u32 s58, 3\ns_cselect_b32 s55, {PRER}, {HIT}\ns_cmp_eq_u32 s58, 1\ns_cselect_b32 s55, {HIT1}, s55')
    a('s_cmp_ge_u32 s32, 10\ns_cbranch_scc1 L_u3c')
    a(f's_waitcnt vmcnt({GW})\ns_barrier\ns_cmp_lg_u32 s58, 1\ns_cbranch_scc1 L_u3c')
    spin_lds(C_R, 7, 'v4', 'v5')
    a('s_branch L_u3c')
    a(f'L_u3l:\ns_waitcnt vmcnt({WD-1})\nbuffer_load_dwordx4 v[16:19], v20, s[40:43], s52 offen\ns_add_u32 s52, s52, s60\ns_sub_u32 s62, s62, 1\nL_u3c:\ns_cmp_lg_u32 s62, 0\ns_cbranch_scc1 L_u3l')
    a('s_branch L_dmc')
    a(f'L_dml:\ns_waitcnt vmcnt({WD-1})\nbuffer_load_dwordx4 v21, s[64:67], s68 offen {NTD} lds\ns_add_u32 s68, s68, s69\ns_add_u32 m0, m0, 2048\ns_sub_u32 s70, s70, 1\nL_dmc:\ns_cmp_lg_u32 s70, 0\ns_cbranch_scc1 L_dml')
    a(f's_add_u32 m0, s71, {L_K}')
    def kbody(w):
        for k in range(4):
            a(f's_waitcnt vmcnt({w-1})\nbuffer_load_dwordx4 v{10+k}, s[72:75], s51 offen {NTK} lds')
            a('s_addk_i32 s51, 2048\ns_add_u32 m0, m0, 2048\ns_and_b32 s51, s51, s59')
    a('L_kloop:')
    a('s_cmp_eq_u32 s53, s55\ns_cbranch_scc1 L_kd\nL_kgo2:')
    kbody(W1)
    a('s_add_u32 s53, s53, 1\ns_cmp_lt_u32 s53, 8\ns_cbranch_scc1 L_kloop')
    signal(C_KISS, 'v10', 'v11')
    ts(1)
    a(f'v_lshlrev_b32 v8, 4, v8\nv_mul_u32_u24 v1, 272, v9\nv_add_u32 v1, v1, v8\ns_lshl_b32 s48, s3, 8')
    a('v_lshl_add_u32 v2, v9, 9, v8\nv_add_u32 v2, s48, v2')
    a('v_mov_b32 v4, 0\nv_mov_b32 v5, 0\nv_mov_b32 v6, 0\nv_mov_b32 v7, 0')
    VB = 24
    assert W2 - 1 < 32 - N3
    for i in range(32):
        w = W2 if i < 32 - N3 else W3
        a(f's_waitcnt vmcnt({w-1})')
        if i == QSTEP: signal(C_QG, 'v10', 'v11', init=False)
        if i == MLSTEP: signal(C_ML, 'v10', 'v11', init=False)
        if i == W2 - 1:
            signal(C_KRDY, 'v10', 'v11', init=False)
            ts(2)
        a(f'buffer_load_dwordx4 v[{VB+4*i}:{VB+4*i+3}], v2, s[44:47], s51 offen {NTS}')
        if i < 31: a('s_addk_i32 s51, 2048\ns_and_b32 s51, s51, s59')
    ts(3)
    get_mode('v12', 'v10', C_CL)
    a('v_mov_b32 v153, 0\nv_mov_b32 v154, 1')
    spin_lds(C_P, 8, 'v12', 'v10')
    ts(4)
    ring = [8, 12, 16, 20, 156, 160, 164][:RING]; D_ = RING - 1
    for k in range(D_): a(f'ds_read_b128 v[{ring[k]}:{ring[k]+3}], v1 offset:{L_P + k*1088}')
    WL = max(W2, W3)
    a('s_cmp_eq_u32 s96, 2')
    for i in range(32):
        if i + D_ < 32:
            k = ring[(i + D_) % RING]
            a(f'ds_read_b128 v[{k}:{k+3}], v1 offset:{L_P + (i+D_)*1088}')
        lg = min(D_, 31 - i)
        if 31 - i < WL: a(f's_waitcnt vmcnt({31-i}) lgkmcnt({lg})')
        else: a(f's_waitcnt lgkmcnt({lg})')
        k = ring[i % RING]
        a(f'v_mfma_f32_16x16x32_bf16 v[4:7], v[{k}:{k+3}], v[{VB+4*i}:{VB+4*i+3}], v[4:7]')
        if 31 - i == G2 and T1G == C_V2: signal(C_V2, 'v153', 'v154', init=False)
    a('s_nop 6')
    store_mode(['buffer_store_dwordx4 v[4:7], v3, s[36:39], s54 offen'], cmp=False)
    signal(C_O, 'v153', 'v154', init=False)
    ts(5)
    a('s_branch L_end')
    a('L_kd:\ns_cmp_lt_u32 s32, 10\ns_cbranch_scc1 L_kd1\ns_barrier\nL_kd1:')
    signal(C_D, 'v4', 'v5')
    ts(6)
    a('s_cmp_lg_u32 s58, 3\ns_cbranch_scc1 L_kgo2')
    spin_lds(C_R, 7, 'v4', 'v5')
    a('s_branch L_kgo2')

    a('L_gdone:')
    a('s_mov_b32 s56, 0x05040100\ns_mov_b32 s57, 0x07060302')
    a(f's_lshl_b32 s26, s35, 7\ns_add_u32 s26, s26, {L_STG}')
    a(f'v_lshrrev_b32 v2, 3, v1\nv_lshl_add_u32 v2, v2, 4, s26\nv_mov_b32 v3, {L_ZERO}\nv_and_b32 v4, 4, v1\nv_cmp_eq_u32 vcc, 0, v4')
    a('v_cndmask_b32 v11, v3, v2, vcc\nv_cndmask_b32 v31, v2, v3, vcc')
    a('v_and_b32 v2, 7, v1\nv_lshlrev_b32 v30, 5, v2\nv_and_b32 v2, 16, v1\nv_add_u32 v30, v30, v2\nv_lshrrev_b32 v2, 5, v1\nv_lshl_add_u32 v30, v2, 3, v30')
    a('v_bfe_u32 v2, v1, 3, 1\nv_lshl_add_u32 v30, v2, 2, v30')
    a('v_lshl_add_u32 v29, v1, 1, s26\ns_lshl_b32 s27, s35, 8\nv_add_u32 v28, s27, v30')
    a(f's_mul_i32 s48, s35, 4352\nv_mul_u32_u24 v2, 272, v9\nv_lshl_add_u32 v2, v8, 4, v2\nv_add_u32 v2, s48, v2')
    a('v_mov_b32 v12, 0\nv_mov_b32 v13, 0\nv_mov_b32 v14, 0\nv_mov_b32 v15, 0')
    for k in range(4): a(f'ds_write_b128 v2, v[12:15] offset:{L_P + k*1088}')
    a('s_movk_i32 s48, 0x2000\ns_mov_b32 s42, 0x380000\ns_mov_b64 s[40:41], s[10:11]')
    a('s_lshl_b32 s49, s31, 3\ns_add_u32 s49, s49, s32\ns_lshl_b32 s49, s49, 7\ns_lshl_b32 s50, s35, 19\ns_add_u32 s49, s49, s50')
    a('s_barrier')
    get_h()
    a('s_cmp_eq_u32 s58, 0\ns_cbranch_scc1 L_qfetch\ns_cmp_eq_u32 s58, 3\ns_cbranch_scc1 L_early')
    a('s_cmp_eq_u32 s35, 7\ns_cbranch_scc1 L_fin')
    a('s_cmp_eq_u32 s58, 1\ns_cbranch_scc1 L_gload')
    a('L_gsilu:')
    a('s_waitcnt vmcnt(8)\nv_lshlrev_b32 v10, 16, v10')
    silu('v10', 'v10', 'v2')
    a(f'v_cvt_pk_bf16_f32 v2, v10, v10\nds_write_b16 v29, v2\nds_read_b128 v[{AOP}:{AOP+3}], v11\nds_read_b128 v[{AOP+4}:{AOP+7}], v31')
    a('L_perm:')
    perms128(BOP, RAW, waits=lambda r: 6 - 2 * r)
    ts(1)
    a('s_cmp_lg_u32 s58, 1\ns_cbranch_scc1 L_fmm')
    if HR == 0:
        a(f's_add_u32 s49, s27, {WS_H}')
        if HF: spin_lds(C_HG, 1)
        elif HMODE: get_mode()
        else: spin_lds(C_D, 2)
        poll_tag(['buffer_load_dword v32, v27, s[36:39], s49 offen sc1', 'buffer_load_dword v33, v27, s[36:39], s49 offen offset:1792 sc1'], [32, 33], 4)
    else:
        a(f's_add_u32 s60, s27, {WS_H}')
        for k in range(1, HR): a(f's_add_u32 s{60+k}, s27, {WS_HR + 4096*k}')
        hl = lambda k: f'buffer_load_dword v{140+2*k}, v27, s[36:39], s{60+k} offen sc1\nbuffer_load_dword v{141+2*k}, v27, s[36:39], s{60+k} offen offset:1792 sc1'
        if HPRE:
            a(f's_lshl_b32 s53, s31, 3\ns_add_u32 s53, s53, s32\ns_lshl_b32 s53, s53, 12\ns_mul_i32 s49, s35, 640\ns_add_u32 s53, s53, s49\ns_add_u32 s53, s53, {WS_Q}\nv_lshlrev_b32 v2, 6, v1')
            for t in range(HPRE):
                m = {1: [0x3ff], 2: [0x1f, 0x3e0]}[HPRE][t]
                a(f's_mov_b64 exec, {m:#x}\nbuffer_load_dword v4, v2, s[36:39], s53 offen sc1\ns_mov_b64 exec, -1\ns_waitcnt vmcnt(0)')
        if HSL: a(f's_sleep {HSL}')
        for k in range(HR):
            a(hl(k))
            if k < HR - 1: a(f's_sleep {HGAP}')
        a('s_mov_b32 s97, 0\nL_hp:')
        for k in range(HR):
            a(f's_waitcnt vmcnt({2*(HR-1)})\nv_xor_b32 v4, s34, v{140+2*k}\nv_xor_b32 v5, s34, v{141+2*k}\nv_or_b32 v6, v4, v5\nv_cmp_ne_u16 vcc, 0, v6\ns_cbranch_vccz L_hd')
            a(hl(k))
        cap()
        a('s_branch L_hp\nL_hd:')
    a('v_add_f32 v10, v4, v5')
    ts(2)
    a(f'v_cvt_pk_bf16_f32 v2, v10, v10\nds_write_b16 v29, v2\nds_read_b128 v[{AOP}:{AOP+3}], v11\nds_read_b128 v[{AOP+4}:{AOP+7}], v31')
    a('L_fmm:\nv_mov_b32 v2, 0\nv_mov_b32 v3, 1')
    gemv128(DD, BOP, rd=False)
    a(f'ds_write_b32 v28, v{DD} offset:{L_RED}')
    signal(C_G, init=False)
    a('s_branch L_qfetch')
    a('L_early:')
    a('s_lshl_b32 s52, s33, 2\ns_add_u32 s52, s52, s32\ns_sub_u32 s52, s52, 14')
    a('s_cmp_eq_u32 s35, 7\ns_cbranch_scc1 L_finm')
    spin_lds(C_D, 2)
    a('s_branch L_gmod')
    a('L_grel:')
    signal(C_R)
    a('s_cmp_eq_u32 s58, 1\ns_cbranch_scc1 L_perm\ns_branch L_gsilu')
    a('L_finx:')
    a('s_cmp_eq_u32 s58, 2\ns_cbranch_scc1 L_finx2\ns_cmp_lg_u32 s58, 1\ns_cbranch_scc1 L_gdone')
    a(f's_lshl_b32 s53, s31, 3\ns_add_u32 s53, s53, s32\ns_lshl_b32 s53, s53, 12\ns_add_u32 s53, s53, {WS_Q}\nv_lshlrev_b32 v2, 6, v1')
    a(('' if (HR and HPRE) else 'buffer_load_dword v16, v2, s[36:39], s53 offen sc1\n') + 's_branch L_gdone')
    a('L_finx2:\ns_cmp_lt_u32 s52, 7\ns_cbranch_scc1 L_gdone')
    a('v_lshlrev_b32 v3, 1, v1\ns_sub_u32 s48, s52, 7\ns_lshl_b32 s48, s48, 7\nv_add_u32 v2, s48, v3')
    for k in range(7): a(f'global_load_ushort v{16+k}, v3, s[4:5] offset:{128*k}')
    a('global_load_ushort v23, v2, s[4:5]\ns_branch L_gdone')
    a('L_fin:')
    a('s_cmp_eq_u32 s58, 1\ns_cbranch_scc1 L_finq\ns_cmp_lt_u32 s52, 7\ns_cbranch_scc1 L_finm')
    a('s_waitcnt vmcnt(0)')
    for k in range(8): a(f'v_lshlrev_b32 v{16+k}, 16, v{16+k}')
    def wave_sum(v):
        row_red('v_add_f32', v)
        a(f'v_mov_b32 v5, {v}\nv_permlane16_swap_b32 {v}, v5\nv_add_f32 {v}, {v}, v5')
        a(f'v_mov_b32 v5, {v}\nv_permlane32_swap_b32 {v}, v5\nv_add_f32 {v}, {v}, v5')
    a('v_add_f32 v24, v16, v17\nv_add_f32 v25, v18, v19\nv_add_f32 v26, v20, v21\nv_add_f32 v24, v24, v25\nv_add_f32 v26, v26, v22\nv_add_f32 v24, v24, v26')
    wave_sum('v24')
    a(f'v_mul_f32 v24, {INV448:#x}, v24')
    for k in range(7): a(f'v_sub_f32 v{16+k}, v{16+k}, v24')
    a('v_mul_f32 v25, v16, v16')
    for k in range(1, 7): a(f'v_fmac_f32 v25, v{16+k}, v{16+k}')
    wave_sum('v25')
    a(f'v_mul_f32 v25, {INV448:#x}, v25')
    ln_tail('v23', 'v24', 'v25', 'v23')
    a('L_finm:')
    a(f's_lshl_b32 s48, s52, 8\ns_add_u32 s48, s48, {WS_MOD}\ns_sub_u32 s49, s52, 7')
    a(f's_lshl_b32 s50, s52, 2\ns_add_u32 s50, s50, {WS_HR}\nv_lshlrev_b32 v5, 8, v1\nv_mov_b32 v6, s30')
    ts(1)
    spin_lds(C_G, 7)
    sum7('v4', 16, 'v27')
    rnd('v4', 'v4')
    a('s_cmp_ge_u32 s49, 7\ns_cbranch_scc1 L_pubm')
    a('v_add_f32 v4, 1.0, v4'); rnd('v4', 'v4'); a('v_mul_f32 v4, v23, v4'); rnd('v4', 'v4')
    a('L_pubm:\nv_or_b32 v4, s34, v4')
    a('buffer_store_dword v4, v27, s[36:39], s48 offen sc1')
    if HF and HR == 0:
        a(f's_cmp_lg_u32 s58, 2\ns_cbranch_scc1 L_pubn\ns_mov_b64 exec, {(1 << HF) - 1:#x}\nbuffer_store_dword v6, v5, s[36:39], s50 offen sc1\ns_mov_b64 exec, -1\nL_pubn:')
    if HR > 1:
        a('s_cmp_lg_u32 s58, 2\ns_cbranch_scc1 L_pubn')
        for k in range(1, HR): a(f's_add_u32 s49, s48, {WS_HR - WS_H + 4096*k}\nbuffer_store_dword v4, v27, s[36:39], s49 offen sc1')
        a('L_pubn:')
    ts(3)
    a('s_branch L_qfetch')
    a('L_finq:')
    a('v_lshrrev_b32 v6, 5, v1\nv_and_b32 v7, 1, v9\nv_lshlrev_b32 v12, 3, v8\nv_lshl_add_u32 v12, v6, 7, v12\nv_lshl_add_u32 v12, v7, 2, v12')
    a('v_lshlrev_b32 v13, 2, v8\nv_lshl_add_u32 v13, v6, 6, v13\nv_lshlrev_b32 v14, 3, v8\nv_lshl_add_u32 v14, v6, 2, v14\nv_add_u32 v14, 0x80, v14')
    a('v_mov_b32_dpp v13, v14 quad_perm:[0,1,2,3] row_mask:0xa bank_mask:0xf')
    a('v_mov_b32 v6, 0\nv_writelane_b32 v6, s30, 16\ns_waitcnt vmcnt(0)')
    if HF and HR == 0:
        a(f's_and_b32 s48, s2, {HF-1}\ns_lshl_b32 s48, s48, 8\ns_add_u32 s48, s48, {WS_HR}\ns_mov_b32 s77, s30\ns_mov_b32 s76, s30')
        spin_lds(C_R, 7)
        a('s_mov_b32 s97, 0\nL_hf:\ns_load_dwordx16 s[60:75], s[28:29], s48 glc'); cap()
        a('s_waitcnt lgkmcnt(0)')
        for k in range(7): a(f's_xor_b64 s[{60+2*k}:{61+2*k}], s[{60+2*k}:{61+2*k}], s[76:77]')
        for k in range(1, 7): a(f's_or_b64 s[60:61], s[60:61], s[{60+2*k}:{61+2*k}]')
        a('s_cbranch_scc0 L_hf2' + (f'\ns_sleep {HFS}' if HFS else '') + '\ns_branch L_hf\nL_hf2:')
        signal(C_HG)
        ts(2)
    get_mode()
    ts(1)
    spin_lds(C_G, 7)
    sum7('v4', 16, 'v12')
    a('v_mov_b32 v5, v4\nv_permlane16_swap_b32 v4, v5\nv_cvt_pk_bf16_f32 v4, v4, v5')
    row_red('v_xor_b32', 'v5', 'v4')
    a('v_xor_b32_dpp v4, v5, v6 quad_perm:[0,1,2,3] row_mask:0xa bank_mask:0xf')
    store_mode([f'buffer_store_dword v4, v13, s[36:39], s53 offen offset:{r*256}' for r in range(R if not ABL & 0x800 else 0)])
    ts(3)
    a('L_qfetch:')
    a('v_lshrrev_b32 v4, 3, v8\nv_mul_u32_u24 v4, 576, v4\nv_lshl_add_u32 v4, v9, 4, v4')
    a(f's_lshl_b32 s49, s35, 13\ns_add_u32 s49, s49, {L_K}\nv_xor_b32 v12, v8, v9\nv_lshlrev_b32 v12, 4, v12\nv_lshl_add_u32 v12, v8, 9, v12\nv_add_u32 v12, s49, v12')
    a('v_xor_b32 v13, 64, v12\nv_xor_b32 v14, 0x80, v12\nv_xor_b32 v15, 0xc0, v12')
    a('v_lshrrev_b32 v6, 5, v1\nv_lshlrev_b32 v7, 2, v6')
    a(f's_mul_i32 s49, s35, 4352\nv_mul_u32_u24 v24, 272, v8\nv_lshl_add_u32 v24, v6, 7, v24\nv_and_b32 v25, 1, v9\nv_mul_u32_u24 v25, 72, v25\nv_add3_u32 v24, v24, v25, s49')
    a('s_lshl_b32 s49, s35, 2\nv_lshl_add_u32 v25, v6, 6, s49')
    a('s_lshr_b32 s49, s35, 2\ns_lshl_b32 s49, s49, 6\ns_lshl_b32 s50, s35, 7\ns_add_u32 s49, s49, s50\nv_lshl_add_u32 v5, v9, 4, s49')
    a(f's_lshl_b32 s48, s31, 3\ns_add_u32 s48, s48, s35\ns_lshl_b32 s48, s48, 4\ns_getreg_b32 s49, hwreg(HW_REG_HW_ID, 8, 1)\ns_add_u32 s49, s49, s48\ns_lshl_b32 s49, s49, 8\ns_add_u32 s49, s49, {WS_Q}')
    a('s_add_u32 s94, s28, s49\ns_addc_u32 s95, s29, 0')
    spin_lds(C_QG, 2)
    ts(4)
    def qld(g): return f's_load_dwordx16 s[60:75], s[94:95], 0 {g}\ns_load_dwordx16 s[76:91], s[94:95], 64 {g}\ns_load_dwordx2 s[92:93], s[94:95], 128 {g}'
    a('s_mov_b32 s97, 0')
    if ABL & 0x800:
        for k in range(60, 92): a(f's_mov_b32 s{k}, 0')
        a('s_branch L_qok')
    a('L_qp:'); a(qld(''))
    a('L_qc:\ns_waitcnt lgkmcnt(0)')
    for k in range(16): a(f's_xor_b64 s[92:93], s[92:93], s[{60+2*k}:{61+2*k}]')
    a('s_xor_b32 s92, s92, s93\ns_cmp_eq_u32 s92, s30\ns_cbranch_scc0 L_qx\nL_qok:')
    slow.append(f'L_qx:\ns_add_u32 s97, s97, 1\ns_bitcmp1_b32 s97, 15\ns_cbranch_scc1 L_end\ns_sleep {SLQ}\ns_cmp_ge_u32 s97, {R // 2}\ns_cbranch_scc1 L_qg\n'
                f's_add_u32 s94, s94, 512\ns_addc_u32 s95, s95, 0\ns_cmp_lt_u32 s97, 5\ns_cbranch_scc1 L_qp\ns_sleep {SLQ2}\ns_branch L_qp\nL_qg:\ns_sleep 32\n' + qld('glc') + '\ns_branch L_qc')
    cnt()
    for kq in range(4):
        if kq == 1: a('s_mov_b32 exec_lo, 0xffff0000')
        if kq == 2: a('s_mov_b32 exec_lo, 0')
        if kq == 3: a('s_mov_b32 exec_hi, 0xffff0000')
        for s in range(2):
            for h in range(2):
                b = 60 + 16 * s + 4 * kq + 2 * h
                a(f'v_mov_b64 v[{AOP+4*s+2*h}:{AOP+4*s+2*h+1}], s[{b}:{b+1}]')
    a('s_mov_b32 exec_lo, 0x10001\ns_mov_b32 exec_hi, 0x10001')
    a(f'ds_write_b128 v5, v[{AOP}:{AOP+3}] offset:{L_Q}\nds_write_b128 v5, v[{AOP+4}:{AOP+7}] offset:{L_Q+64}\ns_mov_b64 exec, -1')
    signal(C_Q)
    ts(5)
    def rdq():
        spin_lds(C_Q, 8)
        if KFIRST: ts(6)
        for s in range(8): a(f'ds_read_b128 v[{32+4*s}:{35+4*s}], v4 offset:{L_Q + 64*s}')
    def rdk():
        spin_lds(C_KRDY, 2)
        if not KFIRST: ts(6)
        for s in range(8): a(f'ds_read_b128 v[{64+4*s}:{67+4*s}], v{12 + (s & 3)} offset:{(s >> 2) * 256}')
    if KFIRST: rdk(); rdq()
    else: rdq(); rdk()
    a('v_mov_b32 v5, 1')
    for s in range(8):
        a(f's_waitcnt lgkmcnt({7-s})')
        a(f'v_mfma_f32_16x16x32_bf16 v[16:19], v[{32+4*s}:{35+4*s}], v[{64+4*s}:{67+4*s}], {"0" if s == 0 else "v[16:19]"}')
    rnd('v16', 'v16')
    a('v_mul_f32 v16, 0x3d800000, v16')
    row_red('v_max_f32', 'v17', 'v16')
    a(f's_mov_b32 exec_lo, 1\ns_mov_b32 exec_hi, 1\nds_max_f32 v7, v17 offset:{L_MX}\ns_mov_b32 exec_hi, 0\nds_add_u32 v3, v5 offset:{C_MX}\ns_mov_b64 exec, -1')
    a(f's_mov_b32 s97, 0\nL_mx:\nds_read_b32 v2, v3 offset:{C_MX}\nds_read_b32 v17, v7 offset:{L_MX}\ns_add_u32 s97, s97, 1\ns_bitcmp1_b32 s97, 20\ns_cbranch_scc1 L_end')
    a('s_waitcnt lgkmcnt(0)\nv_cmp_ne_u32 vcc, 8, v2\ns_cbranch_vccnz L_mx')
    a(f'v_sub_f32 v16, v16, v17\nv_mul_f32 v16, {LOG2E:#x}, v16\nv_exp_f32 v16, v16')
    a('v_cvt_pk_bf16_f32 v18, v16, v16')
    for r in range(4): a(f'ds_write_b16 v24, v18 offset:{L_P + 18*r}')
    row_red('v_add_f32', 'v16')
    a(f's_mov_b32 exec_lo, 1\ns_mov_b32 exec_hi, 1\nds_write_b32 v25, v16 offset:{L_LSUM}\ns_mov_b32 exec_hi, 0\nds_add_u32 v3, v5 offset:{C_P}\ns_mov_b64 exec, -1')
    ts(7)
    a('s_sub_u32 s52, s32, 10\ns_cmp_lt_u32 s52, 14\ns_cbranch_scc1 L_wo')
    a('s_cmp_eq_u32 s33, 7\ns_cbranch_scc1 L_end')
    a('s_cmp_lt_u32 s52, 18\ns_cbranch_scc1 L_ffn')
    a('s_sub_u32 s53, s32, 18\ns_cmp_lt_u32 s32, 10\ns_cselect_b32 s53, s32, s53')
    a('s_cmp_eq_u32 s35, 0\ns_cbranch_scc1 L_red')
    if TPF:
        a('s_cmp_lt_u32 s35, 4\ns_cbranch_scc1 L_hw1')
        a(f's_lshl_b32 s48, s53, 2\ns_add_u32 s48, s48, s35\ns_sub_u32 s48, s48, 4\ns_lshl_b32 s48, s48, 12\ns_mul_i32 s49, s33, {256*896}\ns_add_u32 s48, s48, s49\nv_lshlrev_b32 v4, 4, v1')
        a('s_mov_b64 s[40:41], s[18:19]\ns_mov_b32 s42, 0x188000')
        spin_lds(HG, 2)
        for i in range(4): a(f'buffer_load_dwordx4 v[16:19], v4, s[40:43], s48 offen offset:{i*1024}')
        ts(8)
        if TS and PROBE is None and TSK is None: a('s_waitcnt vmcnt(0)'); ts(9)
        a('s_branch L_end\nL_hw1:')
        n1 = -(-(28 - NE) * 8 // 42)
        if n1 and TPF > 1:
            a(f's_mul_i32 s48, s53, 3\ns_add_u32 s48, s48, s35\ns_add_u32 s48, s48, {NE*8 - 1}\ns_mul_i32 s48, s48, {2*3584}\ns_lshl_b32 s49, s33, 9\ns_add_u32 s48, s48, s49')
            a('v_lshrrev_b32 v4, 5, v1\nv_mul_u32_u24 v4, 3584, v4\nv_and_b32 v5, 31, v1\nv_lshl_add_u32 v4, v5, 4, v4\ns_mov_b64 s[40:41], s[16:17]\ns_mov_b32 s42, 0x188000')
            spin_lds(HG, 2)
            for i in range(n1): a(f'buffer_load_dwordx4 v[16:19], v4, s[40:43], s48 offen\ns_add_u32 s48, s48, {42*2*3584}')
    a('s_branch L_end')
    a('L_svc:')
    a('v_lshrrev_b32 v6, 5, v1\nv_lshlrev_b32 v7, 2, v6')
    a(f's_lshl_b32 s50, s31, 12\ns_add_u32 s50, s50, {WS_ML}\ns_lshl_b32 s48, s32, 7\ns_add_u32 s48, s48, s50')
    a('v_and_b32 v4, 3, v1\nv_lshlrev_b32 v4, 5, v4\nv_lshl_add_u32 v4, v6, 4, v4\nv_mov_b32 v23, 0')
    a(f'v_lshlrev_b32 v5, 2, v8\nv_lshl_add_u32 v5, v6, 6, v5\nv_lshlrev_b32 v10, 3, v1\ns_lshl_b32 s51, s31, 8\ns_add_u32 s51, s51, {WS_HELLO}\ns_getreg_b32 s52, hwreg(HW_REG_XCC_ID, 0, 4)')
    a('s_cmp_lg_u32 s32, 10\ns_cbranch_scc1 L_sv1\ns_mov_b32 exec_hi, 0\nbuffer_load_dwordx2 v[12:13], v10, s[36:39], s51 offen sc1\nbuffer_load_dwordx2 v[12:13], v10, s[36:39], s51 offen offset:2048 sc1\ns_mov_b64 exec, -1\nL_sv1:')
    a(f's_lshl_b32 s53, s31, 5\ns_add_u32 s53, s53, s32\ns_lshl_b32 s53, s53, 11\ns_add_u32 s53, s53, {WS_O}\nv_lshlrev_b32 v11, 6, v1')
    a('s_mov_b32 s49, 0xff800000\nv_writelane_b32 v30, s49, 8\nv_writelane_b32 v30, s49, 9')
    pre = 's_mov_b64 exec, 15\nbuffer_load_dword v16, v4, s[36:39], s48 offen sc1\ns_mov_b32 exec_lo, -1\nbuffer_load_dword v16, v11, s[36:39], s53 offen sc1\ns_mov_b64 exec, -1'
    a(f's_cmp_lt_u32 s32, {PRJ}\ns_cbranch_scc1 L_sv2\n' + pre + '\ns_waitcnt vmcnt(2)\ns_branch L_sv4\nL_sv2:\ns_waitcnt vmcnt(0)\nL_sv4:')
    a('v_readfirstlane_b32 s30, v17\ns_and_b32 s49, s30, 0x7f7f7f7f\ns_add_u32 s49, s49, 0x01010102\ns_and_b32 s30, s30, 0x80808080\ns_xor_b32 s30, s30, s49\ns_or_b32 s30, s30, 1')
    a('v_writelane_b32 v30, s30, 10\ns_and_b32 s34, s30, 0xffff\nds_write_b32 v27, v30')
    a('v_mov_b32 v14, s30\nv_mov_b32 v15, s52\ns_lshl_b32 s49, s32, 3\ns_add_u32 s49, s49, s51\ns_mov_b64 exec, 1')
    a('buffer_store_dwordx2 v[14:15], v10, s[36:39], s49 offen\ns_mov_b64 exec, -1\ns_waitcnt lgkmcnt(0)')
    ts(1)
    a('s_barrier')
    ts(2)
    spin_lds(C_D, 2)
    a(f's_cmp_ge_u32 s32, {PRJ}\ns_cbranch_scc1 L_sv3\n' + pre + '\nL_sv3:\ns_mov_b32 exec_hi, 0\ns_mov_b32 s97, 0\ns_mov_b32 s96, 1\nL_hel:\nbuffer_load_dwordx2 v[12:13], v10, s[36:39], s51 offen sc1')
    a(f's_add_u32 s97, s97, 1\ns_waitcnt vmcnt(0)\nv_cmp_ne_u64 vcc, v[12:13], v[14:15]\ns_cbranch_vccz L_hel1\ns_sleep 2\ns_cmp_lt_u32 s97, {HTRY}\ns_cbranch_scc1 L_hel\ns_branch L_hel2')
    a(f'L_hel1:\ns_mov_b32 s96, {2 if FAST else 1}\nL_hel2:\ns_mov_b64 exec, -1')
    if TS: a('s_lshl_b32 s97, s97, 4\ns_add_u32 s97, s97, s96\nv_writelane_b32 v0, s97, 14')
    a(f'v_mov_b32 v2, s96\nv_mov_b32 v3, 0\nds_write_b32 v3, v2 offset:{C_M}\nv_mov_b32 v22, s30')
    ts(3)
    a('v_mov_b32 v16, -1\nv_mov_b32 v17, -1\nv_mov_b32 v18, -1\nv_mov_b32 v19, -1\nv_lshlrev_b32 v11, 4, v1')
    store_mode(['buffer_store_dwordx4 v[16:19], v11, s[36:39], s53 offen', 'buffer_store_dwordx4 v[16:19], v11, s[36:39], s53 offen offset:1024',
                's_waitcnt vmcnt(0)', 's_mov_b64 exec, 1', 'buffer_store_dwordx2 v[14:15], v10, s[36:39], s49 offen offset:2048'])
    a(f'ds_write_b32 v3, v2 offset:{C_CL}\ns_mov_b64 exec, -1')
    ts(4)
    spin_lds(C_P, 8)
    a(f'ds_read_b32 v21, v5 offset:{L_LSUM}\nds_read_b32 v20, v7 offset:{L_MX}\ns_waitcnt lgkmcnt(0)\nv_or_b32 v20, s34, v20')
    row_red('v_add_f32', 'v21')
    a('s_mov_b32 exec_lo, 15\ns_mov_b32 exec_hi, 15')
    store_mode(['buffer_store_dwordx4 v[20:23], v4, s[36:39], s48 offen'])
    a('s_mov_b64 exec, -1')
    ts(8)
    a('s_sub_u32 s48, s32, 10\ns_cmp_ge_u32 s48, 14\ns_cbranch_scc1 L_end')
    a('s_mov_b32 exec_hi, 0\ns_mov_b32 s97, 0\nL_clp:\nbuffer_load_dword v12, v10, s[36:39], s51 offen offset:2048 sc1'); cap()
    a('s_waitcnt vmcnt(0)\nv_cmp_ne_u32 vcc, s30, v12\ns_cbranch_vccnz L_clp\ns_mov_b64 exec, -1')
    signal(C_C)
    spin_lds(C_ML, 2)
    a('s_cmp_ge_u32 s48, 7\ns_cselect_b32 s48, 16, 0\ns_add_u32 s50, s50, s48\nv_lshlrev_b32 v2, 7, v1\ns_mov_b32 exec_hi, 0')
    a('s_mov_b32 s97, 0\nL_mlp:')
    a('buffer_load_dwordx4 v[12:15], v2, s[36:39], s50 offen sc1')
    cap()
    a('s_waitcnt vmcnt(0)\nv_cmp_ne_u32 vcc, s30, v14\nv_cmp_ne_u16 s[52:53], s34, v12\ns_or_b64 exec, vcc, s[52:53]\ns_cbranch_execnz L_mlp')
    a('s_mov_b64 exec, -1')
    ts(9)
    a('v_and_b32 v12, 0xffff0000, v12')
    row_red('v_max_f32', 'v14', 'v12')
    a('v_mov_b32 v5, v14\nv_permlane16_swap_b32 v14, v5\nv_max_f32 v14, v14, v5')
    a(f'v_sub_f32 v12, v12, v14\nv_mul_f32 v12, {LOG2E:#x}, v12\nv_exp_f32 v12, v12\nv_mul_f32 v13, v13, v12')
    row_red('v_add_f32', 'v13')
    a('v_mov_b32 v5, v13\nv_permlane16_swap_b32 v13, v5\nv_add_f32 v13, v13, v5\nv_rcp_f32 v13, v13\nv_mul_f32 v12, v12, v13')
    a(f'v_and_b32 v2, 7, v1\nv_lshrrev_b32 v3, 3, v1\nv_lshlrev_b32 v2, 4, v2\nv_lshl_add_u32 v2, v3, 2, v2\ns_mov_b32 exec_hi, 0\nds_write_b32 v2, v12 offset:{L_WT}\ns_mov_b64 exec, -1')
    signal(C_W)
    a('s_branch L_end')
    a('L_wo:')
    a('s_cmp_ge_u32 s52, 7\ns_cselect_b32 s51, 1, 0\ns_mul_i32 s48, s51, 7\ns_sub_u32 s52, s52, s48')
    a('s_lshr_b32 s48, s35, 2\ns_lshl_b32 s48, s48, 7\ns_and_b32 s49, s35, 1\ns_lshl_b32 s49, s49, 6\ns_add_u32 s48, s48, s49')
    a(f's_and_b32 s49, s35, 2\ns_lshl_b32 s49, s49, 1\ns_add_u32 s48, s48, s49\ns_lshl_b32 s48, s48, 7\ns_add_u32 s48, s48, {L_WO}')
    a('v_lshlrev_b32 v12, 11, v9\nv_lshl_add_u32 v12, v8, 3, v12\nv_add_u32 v12, s48, v12')
    for j in range(8): a(f'ds_read_b64 v[{RAW+2*j}:{RAW+2*j+1}], v12 offset:{(8*(j>>2) + (j&3)) * 128}')
    a('v_lshrrev_b32 v4, 3, v1\nv_and_b32 v5, 7, v1\nv_lshlrev_b32 v10, 11, v4\nv_lshl_add_u32 v10, v5, 4, v10')
    a('v_lshl_add_u32 v5, v5, 2, v9\nv_lshl_add_u32 v5, v5, 1, s26\nv_lshlrev_b32 v4, 4, v4')
    a('s_lshl_b32 s48, s31, 16\ns_lshr_b32 s49, s35, 2\ns_lshl_b32 s49, s49, 10\ns_add_u32 s48, s48, s49\ns_lshl_b32 s49, s51, 9\ns_add_u32 s48, s48, s49')
    a(f's_and_b32 s49, s35, 3\ns_lshl_b32 s49, s49, 7\ns_add_u32 s48, s48, s49\ns_add_u32 s60, s48, {WS_O}')
    a('s_add_u32 s61, s60, 0x4000\ns_add_u32 s62, s60, 0x8000\ns_add_u32 s63, s60, 0xc000')
    a('v_lshl_add_u32 v7, v8, 2, v9\nv_lshl_add_u32 v7, v7, 2, s27\nv_lshl_add_u32 v11, v9, 4, s26')
    a(f's_lshl_b32 s48, s31, 1\ns_add_u32 s48, s48, s51\ns_lshl_b32 s48, s48, 8\ns_lshl_b32 s49, s52, 12\ns_add_u32 s48, s48, s49\ns_add_u32 s48, s48, {WS_T2}')
    a('s_waitcnt lgkmcnt(0)')
    for r in range(4):
        for e in range(4):
            lo = RAW + 4 * r + (e >> 1)
            a(f'v_perm_b32 v{BOP + 4*e + r}, v{lo+2}, v{lo}, {"s57" if e & 1 else "s56"}')
    for i in range(4): a(f's_mov_b64 s[{64+2*i}:{65+2*i}], -1')
    a('v_lshlrev_b32 v6, 2, v1'); tagreg('v9', 'v6')
    for c in range(1, NC): a(f's_add_u32 s{87+c}, s48, {c * 0x8000}')
    for r in range(0, 16, 2): a(f'v_mov_b64 v[{32+r}:{33+r}], -1')
    ts(8)
    spin_lds(C_C, 1)
    spin_lds(T1G, 2)
    ts(9)
    a('s_mov_b32 s97, 0\ns_mov_b32 s59, 0\nL_t1:')
    for i in range(4): a(f's_mov_b64 exec, s[{64+2*i}:{65+2*i}]\nbuffer_load_dwordx4 v[{32+4*i}:{35+4*i}], v10, s[36:39], s{60+i} offen sc1')
    a(f's_mov_b64 exec, -1\nds_read_b32 v2, v3 offset:{C_W}\nds_read_b128 v[24:27], v4 offset:{L_WT}')
    a('s_add_u32 s97, s97, 1\ns_bitcmp1_b32 s97, 19\ns_cbranch_scc1 L_end')
    a(f's_waitcnt lgkmcnt(0)\nv_cmp_ne_u32 s[72:73], 1, v2\ns_cmp_eq_u32 s97, 1\ns_cbranch_scc0 L_t1w\ns_waitcnt vmcnt(0)\nL_t1w:\ns_waitcnt vmcnt({T1D})')
    for i in range(4): a(f'v_cmp_eq_u32 s[{64+2*i}:{65+2*i}], -1, v{35+4*i}')
    a('s_or_b64 s[72:73], s[72:73], s[64:65]\ns_or_b64 s[74:75], s[66:67], s[68:69]\ns_or_b64 s[72:73], s[72:73], s[70:71]\ns_or_b64 s[72:73], s[72:73], s[74:75]\ns_cbranch_scc1 L_t1\nL_t1f:')
    x = ['L_t1x:', 's_cmp_eq_u32 s59, 1', 's_cbranch_scc1 L_t1d', 's_waitcnt vmcnt(0)', 'v_max3_u32 v13, v32, v33, v34']
    for r in range(35, 47, 2): x.append(f'v_max3_u32 v13, v13, v{r}, v{r+1}')
    x += ['v_max_u32 v13, v13, v47', 'v_cmp_eq_u32 vcc, -1, v13', 's_mov_b32 s59, 1', 's_cbranch_vccz L_t1f', 's_mov_b32 s59, 0']
    x += [f's_mov_b64 s[{64+2*i}:{65+2*i}], -1' for i in range(4)] + ['s_branch L_t1']
    slow.append('\n'.join(x))
    for i in range(4):
        w = 24 + (i & 2); sel = i & 1
        for h in (0, 2):
            if i == 0: a(f'v_pk_mul_f32 v[{12+h}:{13+h}], v[{32+h}:{33+h}], v[{w}:{w+1}] op_sel:[0,{sel}] op_sel_hi:[1,{sel}]')
            else: a(f'v_pk_fma_f32 v[{12+h}:{13+h}], v[{32+4*i+h}:{33+4*i+h}], v[{w}:{w+1}], v[{12+h}:{13+h}] op_sel:[0,{sel},0] op_sel_hi:[1,{sel},1]')
    red_scatter(12)
    a('v_add_f32_dpp v12, v12, v12 row_ror:8 row_mask:0xf bank_mask:0xf')
    a('v_cmp_u_f32 vcc, v12, v12\nv_cvt_pk_bf16_f32 v12, v12, v12\ns_cbranch_vccnz L_t1x\nL_t1d:')
    cnt(); ts(11)
    a(f'ds_write_b16 v5, v12\nds_read_b128 v[{AOP}:{AOP+3}], v11\ns_waitcnt lgkmcnt(0)')
    for e in range(4): a(f'v_mfma_f32_16x16x32_bf16 v[{DD+4*e}:{DD+4*e+3}], v[{AOP}:{AOP+3}], v[{BOP+4*e}:{BOP+4*e+3}], 0')
    for e in range(1, 4): a(f'v_mov_b32_dpp v{DD}, v{DD+4*e} quad_perm:[0,1,2,3] row_mask:{1<<e:#x} bank_mask:0xf')
    a(f'ds_write_b32 v7, v{DD} offset:{L_RED}\ns_cmp_lg_u32 s35, 0\ns_waitcnt lgkmcnt(0)\ns_barrier\ns_cbranch_scc1 L_end')
    for k in range(4): a(f'ds_read2st64_b32 v[{16+2*k}:{17+2*k}], v30 offset0:{1+2*k} offset1:{2+2*k}')
    a('s_waitcnt lgkmcnt(2)\nv_pk_add_f32 v[16:17], v[16:17], v[18:19]\ns_waitcnt lgkmcnt(0)\nv_pk_add_f32 v[20:21], v[20:21], v[22:23]')
    a('v_pk_add_f32 v[16:17], v[16:17], v[20:21]\nv_add_f32 v16, v16, v17')
    a('v_and_or_b32 v16, v16, s55, v9\nbuffer_store_dword v16, v6, s[36:39], s48 offen sc1')
    for c in range(1, NC): a(f'buffer_store_dword v16, v6, s[36:39], s{87+c} offen sc1')
    ts(12)
    if WB == 1: a('s_cmp_lg_u32 s32, 10\ns_cbranch_scc1 L_end\nbuffer_wbl2 sc1')
    a('s_branch L_end')
    a('L_red:')
    a('s_lshr_b32 s60, s53, 1\ns_and_b32 s61, s53, 1\ns_lshl_b32 s54, s53, 7\ns_lshl_b32 s50, s60, 6\ns_lshl_b32 s49, s61, 1\ns_add_u32 s50, s50, s49')
    a('v_lshrrev_b32 v6, 5, v1\nv_lshl_add_u32 v14, v8, 1, v6\nv_lshlrev_b32 v4, 2, v14\nv_and_b32 v14, 7, v14\nv_lshl_add_u32 v14, v14, 3, s50')
    a('v_bfe_u32 v10, v1, 3, 1\nv_lshl_add_u32 v14, v10, 2, v14\nv_bfe_u32 v10, v1, 2, 1\nv_add_u32 v14, v14, v10\nv_lshlrev_b32 v10, 1, v14\nv_lshlrev_b32 v14, 2, v14')
    a(f's_movk_i32 s48, {WS_MODF}\ns_movk_i32 s49, {WS_MODF + 21*256}')
    a('global_load_ushort v24, v10, s[4:5]')
    poll_tag(['buffer_load_dword v32, v14, s[36:39], s48 offen sc1', 'buffer_load_dword v33, v14, s[36:39], s49 offen sc1'], [32, 33], 25)
    get_mode()
    a('v_lshlrev_b32 v29, 4, v1\nv_bfe_u32 v28, s30, v29, 8\nv_add_u32 v29, 8, v29\nv_bfe_u32 v29, s30, v29, 8')
    a('v_lshlrev_b32 v24, 16, v24\nv_lshlrev_b32 v5, 8, v9\nv_lshl_add_u32 v5, v8, 3, v5')
    a('v_lshrrev_b32 v11, 3, v1\nv_lshlrev_b32 v11, 8, v11\nv_and_b32 v7, 7, v1\nv_lshl_add_u32 v11, v7, 3, v11')
    a(f's_lshl_b32 s49, s61, 7\ns_lshl_b32 s48, s60, 12\ns_add_u32 s48, s48, s49\ns_add_u32 s48, s48, {WS_T2}')
    if NC > 1: a((f's_and_b32 s50, s33, {NC-1}' if NC < 7 else 's_mov_b32 s50, s33') + '\ns_lshl_b32 s50, s50, 15\ns_add_u32 s48, s48, s50')
    a(f's_lshl_b32 s50, s33, 11\ns_add_u32 s50, s50, {WS_X1}\ns_lshl_b32 s51, s53, 4\ns_add_u32 s51, s51, s50\ns_add_u32 s50, s50, s54')
    a(f's_mul_i32 s52, s60, 7168\ns_add_u32 s52, s52, s49\ns_lshl_b32 s49, s33, 6\ns_add_u32 s52, s52, s49\ns_add_u32 s52, s52, {WS_T3}\ns_add_u32 s53, s52, 4096')
    a('v_lshlrev_b32 v6, 3, v6\nv_mov_b32 v23, s30\ns_lshl_b32 s49, s33, 3\ns_lshl_b32 s62, 0xff, s49')
    a(f'v_lshlrev_b32 v7, 10, v1\ns_lshl_b32 s54, s31, 16\ns_add_u32 s54, s54, {WS_O}')
    spin_lds(C_O, 2)
    if OG:
        a(f's_mov_b32 s97, 0\nL_og:\nbuffer_load_dword v2, v7, s[36:39], s54 offen sc1'); cap()
        a('s_waitcnt vmcnt(0)\nv_cmp_eq_u32 vcc, -1, v2\ns_mov_b64 exec, vcc\ns_cbranch_execnz L_og\ns_mov_b64 exec, -1')
    ts(10)
    gather_tag(32, 12, 'v5', [('s48', i * 1024) for i in range(4)], msk=MSK)
    ts(11)
    rnd('v12', 'v12'); a('s_cmp_eq_u32 s96, 2\nv_mul_f32 v12, v25, v12'); rnd('v12', 'v12'); a('v_add_f32 v12, v24, v12'); rnd('v24', 'v12')
    a('v_or_b32 v13, s34, v24\nv_mov_b32 v22, v24\nv_mul_f32 v12, v24, v24')
    store_mode(['buffer_store_dword v13, v4, s[36:39], s50 offen'], cmp=False)
    a('v_permlane32_swap_b32 v22, v12\nv_add_f32 v22, v22, v12')
    row_red('v_add_f32', 'v22')
    a('s_mov_b32 exec_lo, 1\ns_mov_b32 exec_hi, 1')
    store_mode(['buffer_store_dwordx2 v[22:23], v6, s[36:39], s51 offen offset:1792'], cmp=False)
    a('s_mov_b64 exec, -1')
    ts(12)
    if WB == 2: a('s_cmp_lg_u32 s32, 0\ns_cbranch_scc1 L_nwb\nbuffer_wbl2 sc1\nL_nwb:')
    a(f's_cmp_ge_u32 s33, {T3M}\ns_cbranch_scc1 L_epoch')
    if T3M == 2:
        gather_tag(96, 12, 'v11', [('s52', 0), ('s52', 2048), ('s53', 0), ('s53', 2048)], mask=0, PD=PD3, GAP=GAP3)
        a('v_add_f32_dpp v12, v12, v12 row_ror:8 row_mask:0xf bank_mask:0xf')
        ts(13)
        rnd('v12', 'v12'); a('s_mov_b32 exec_lo, s62\nv_mul_f32 v12, v26, v12\ns_mov_b32 exec_hi, s62'); rnd('v12', 'v12'); a('v_add_f32 v12, v24, v12\nv_cvt_pk_bf16_f32 v12, v12, v12')
    else:
        gather_tag(96, 80, 'v5', [('s52' if i < 4 else 's53', (i & 3) * 1024) for i in range(7)], PD=PD3, GAP=GAP3)
        ts(13)
        rnd('v12', 'v80'); a('v_mul_f32 v12, v26, v12'); rnd('v12', 'v12'); a('v_add_f32 v12, v24, v12\nv_cvt_pk_bf16_f32 v12, v12, v12')
    a(f'global_store_short v10, v12, s[24:25] {OUTF}')
    a('s_branch L_end')
    a('L_epoch:\ns_cmp_lg_u32 s2, 2\ns_cbranch_scc1 L_end')
    a('v_mov_b32 v2, 0\ns_mov_b64 exec, 1\nbuffer_store_dword v23, v2, s[36:39], 0 offen sc1\ns_branch L_end')
    a('L_ffn:')
    a('s_cmp_ge_u32 s35, 7\ns_cbranch_scc1 L_end')
    RAW2, B2 = 112, 32
    a('s_lshl_b32 s51, s33, 2\ns_add_u32 s51, s51, s32\ns_sub_u32 s51, s51, 24')
    a(f's_mul_i32 s49, s51, {64*896}\ns_lshl_b32 s50, s35, 7\ns_add_u32 s49, s49, s50')
    a(f'v_lshrrev_b32 v4, 3, v1\nv_and_b32 v6, 7, v1\nv_lshlrev_b32 v5, 4, v6\nv_mul_u32_u24 v13, {8*896}, v4\nv_add_u32 v13, v13, v5')
    a('v_and_b32 v7, 28, v30\nv_lshlrev_b32 v7, 2, v7\nv_lshl_add_u32 v7, v6, 1, v7\nv_add_u32 v7, s26, v7')
    a(f'v_mul_u32_u24 v14, 3584, v4\nv_add_u32 v14, v14, v5\ns_mul_i32 s48, s35, {64*3584}\ns_lshl_b32 s50, s51, 7\ns_add_u32 s48, s48, s50')
    fs = 0 if ABL & 64 else 0x188000
    a(f's_mov_b64 s[40:41], s[16:17]\ns_mov_b32 s42, {fs}\ns_mov_b64 s[44:45], s[18:19]\ns_mov_b32 s46, {fs}')
    a(f's_add_u32 s54, s27, {WS_MODF + 7*256}')
    poll_tag(['buffer_load_dword v32, v30, s[36:39], s54 offen sc1', 'buffer_load_dword v33, v30, s[36:39], s54 offen offset:1792 sc1'], [32, 33], 24)
    a('v_add_f32 v25, 1.0, v25'); rnd('v25', 'v25')
    a(f's_lshl_b32 s53, s33, 11\ns_add_u32 s53, s53, {WS_X1}\ns_add_u32 s52, s53, s27\nv_lshlrev_b32 v5, 4, v8\nv_min_u32 v5, 0xd0, v5\nv_cmp_lt_u32 s[60:61], 13, v8')
    tagreg('v9', 'v27')
    a(f's_lshl_b32 s50, s35, 13\ns_add_u32 s50, s50, {L_WO}\nv_lshl_add_u32 v12, v1, 4, s50')
    for j in range(8): a(f'ds_read_b128 v[{RAW+4*j}:{RAW+4*j+3}], v12 offset:{j*1024}')
    spin_lds(C_O, 2)
    a('buffer_load_dword v144, v27, s[36:39], s52 offen sc1\nbuffer_load_dword v144, v5, s[36:39], s53 offen offset:1792 sc1')
    if NE < 28:
        a(f's_cmp_lt_u32 s35, {NE // 4}\ns_cbranch_scc1 L_fw2')
        loads128(RAW, 's[40:43]', 'v14', 's48', 8 * 3584, NTW)
        a('L_fw2:')
    loads128(RAW2, 's[44:47]', 'v13', 's49', 896, NTW)
    ts(8)
    a(f's_mul_i32 s48, s35, 7168\ns_lshl_b32 s49, s51, 8\ns_add_u32 s48, s48, s49\ns_add_u32 s48, s48, {WS_T3}')
    a('s_waitcnt vmcnt(8)')
    perms128(BOP, RAW)
    perms128(B2, RAW2, waits=lambda r: 6 - 2 * r)
    ts(9)
    xl = lambda k: f'buffer_load_dword v{112+8*k}, v27, s[36:39], s52 offen sc1\nbuffer_load_dwordx4 v[{116+8*k}:{119+8*k}], v5, s[36:39], s53 offen offset:1792 sc1'
    a('s_mov_b32 s97, 0'); a(xl(0)); a('s_sleep 1\nL_xp:')
    cap()
    for k in range(2):
        x = 112 + 8 * k
        a(xl(1 - k))
        a(f's_waitcnt vmcnt(2)\nv_xor_b32 v14, s34, v{x}\nv_xor_b32 v15, s30, v{x+5}\nv_xor_b32 v16, s30, v{x+7}\nv_and_b32 v17, 0xffff, v14')
        a(f'v_cndmask_b32 v12, v{x+4}, 0, s[60:61]\nv_or3_b32 v15, v15, v16, v17\nv_cndmask_b32 v13, v{x+6}, 0, s[60:61]\nv_cmp_ne_u32 vcc, 0, v15')
        a('s_cbranch_vccz L_xd' if k == 0 else 's_cbranch_vccnz L_xp')
    a('L_xd:')
    cnt(); ts(11)
    for sh in (8, 4, 2, 1):
        for v in ('v12', 'v13'): a(f'v_add_f32_dpp {v}, {v}, {v} row_ror:{sh} row_mask:0xf bank_mask:0xf')
    a(f'v_mul_f32 v12, {INV448:#x}, v12\nv_mul_f32 v13, {INV448:#x}, v13')
    a('v_fma_f32 v13, -v12, v12, v13\nv_max_f32 v13, 0, v13')
    ln_tail('v14', 'v12', 'v13', 'v14')
    a('v_mul_f32 v14, v14, v25'); rnd('v14', 'v14'); a('v_add_f32 v14, v14, v24\nv_cvt_pk_bf16_f32 v14, v14, v14\nds_write_b16 v7, v14')
    gemv128(DD, BOP)
    a(f'ds_write_b32 v28, v{DD} offset:{L_RED}\ns_waitcnt lgkmcnt(0)\ns_barrier')
    sum7('v12', 12, 'v27')
    rnd('v12', 'v12')
    silu('v12', 'v12', 'v13')
    a('v_cvt_pk_bf16_f32 v12, v12, v12\nds_write_b16 v29, v12')
    gemv128(DD, B2)
    a(f'v_and_or_b32 v{DD}, v{DD}, s55, v9\nbuffer_store_dword v{DD}, v27, s[36:39], s48 offen sc1')
    ts(12)
    a('L_end:')
    if TS:
        a('s_mov_b64 exec, -1')
        ts(15)
    if TS and PROBE is not None:
        probe(a, PROBE, lab)
    elif TS:
        if TSK is not None: a(f's_bitcmp1_b32 {sum(1 << w for w in TSW)}, s3\ns_cbranch_scc0 L_exit')
        a(f's_mul_i32 s48, s2, {NW}\ns_add_u32 s48, s48, s3\ns_lshl_b32 s48, s48, 6\ns_add_u32 s48, s48, {WS_TS}')
        a('v_mbcnt_lo_u32_b32 v2, -1, 0\nv_lshlrev_b32 v2, 2, v2\ns_mov_b64 exec, 0xffff\nbuffer_store_dword v0, v2, s[36:39], s48 offen')
    a('L_exit:\ns_endpgm')
    for x in slow: a(x)
    a('L_last:')
    a.L = hz.fix(a.L)
    a.tail(168 if RING > 4 else 156, 102)
    return a.text().replace('.p2align 8\n', f'.p2align {AL}\n.p2align 8\n', 1).replace('.amdhsa_user_sgpr_count 2', '.amdhsa_float_denorm_mode_32 3\n.amdhsa_user_sgpr_count 2')
if __name__ == '__main__':
    open('v16.s', 'w').write(gen())
    open('v16_ts.s', 'w').write(gen(TS=True))
    for arg in sys.argv[1:]:
        nm, kv = arg.split('=')
        kw = {k: eval(v) for k, v in (x.split(':') for x in kv.split(','))}
        open(f'v16_{nm}_ts.s', 'w').write(gen(TS=True, **kw))
        open(f'v16_{nm}.s', 'w').write(gen(**kw))
```

```python
import sys
from asmlib import *
import hz
from probe2 import probe

WS_E = 0x0
WS_MOD = 0x1000
WS_H, WS_MODF = WS_MOD, WS_MOD + 14 * 256
WS_HELLO = 0x4000
WS_X1 = 0x5000
WS_ML = 0x9000
WS_T3, WS_T2 = 0x12000, 0x20000
WS_O = 0x80000
WS_Q = 0x100000
WS_TS = 0x200000
C_CL, C_C, C_Q, C_MX, C_P, C_ML, C_G, C_V2 = [4 * i for i in range(8)]
L_MX, L_H, C_O, C_D, C_M, C_QG, C_R = 32, 40, 44, 48, 52, 56, 60
L_LSUM, L_ZERO, C_K, C_H, L_RED, L_STG, L_WT, L_Q, L_P, L_K = 64, 96, 192, 208, 256, 2304, 3328, 3456, 4608, 39424
L_WO = L_K + 65536
LDS_BYTES = L_WO + 57344
LOG2E = 0x3fb8aa3b
INV448 = 0x3b124925
STARTS = [128 * j for j in range(33)]
NW = 11

def gen(W1=11, W2=12, W3=16, N3=8, WD=None, TS=False, TSK=None, TSW=(0, 1, 2, 3), PROBE=None, NTS='nt', NTD='', NTW='',
        R=16, SLQ=2, SLQ2=6, AJ=4096, AG=2048, SKIPX=5, GW=0, HIT1=3, HIT=3, PRER=4, CNT=(1, 10, 1, 14, 4), SVG=2, QSTEP=5, MLSTEP=22, FAST=True, HTRY=4,
        PD=2, GAP=5, PD3=5, GAP3=1, NE=0, ABL=0, HG=C_O, FG=C_O, RSL=0, G2=3, T1D=0, RING=7, OG=True, TILE=True, EXACT=False, NOSC=False, PAD=3328):
    WD = WD or W1
    cS, cM, cW, cF, cR = CNT
    assert 16*cS + 4*cM + 28*cW + 8*cF + 8*cR >= 224
    a = A()
    a.head(256, 64 * NW, LDS_BYTES)
    uid = [0]
    RAW, BOP, AOP, DD = 32, 64, 16, 96
    def lab(p):
        uid[0] += 1; return f'L_{p}{uid[0]}'
    def ts(k):
        if TS and (TSK is None or k in TSK) and (PROBE is None or (PROBE != 'base' and k == PROBE[0])):
            a(f's_memrealtime s[98:99]\ns_waitcnt lgkmcnt(0)\nv_writelane_b32 v0, s98, {k}')
    def cnt():
        if TS: a('v_writelane_b32 v0, s97, 14')
    def rnd(d, s): a(f'v_cvt_pk_bf16_f32 {d}, 0, {s}')
    def spin_lds(off, val, vt='v2', vz='v3', addr=None):
        l = lab('spin')
        a(f's_mov_b32 s97, 0\nv_mov_b32 {vz}, 0\n{l}:')
        a(f'ds_read_b32 {vt}, {addr or vz} offset:{off}\ns_add_u32 s97, s97, 1\ns_bitcmp1_b32 s97, 20\ns_cbranch_scc1 L_end')
        a(f's_waitcnt lgkmcnt(0)\nv_cmp_ne_u32 vcc, {val}, {vt}\ns_cbranch_vccnz {l}')
    def cap(b=17): a(f's_add_u32 s97, s97, 1\ns_bitcmp1_b32 s97, {b}\ns_cbranch_scc1 L_end')
    def signal(off, vz='v2', vo='v3', init=True):
        if init: a(f'v_mov_b32 {vz}, 0\nv_mov_b32 {vo}, 1')
        a(f's_mov_b64 exec, 1\nds_add_u32 {vz}, {vo} offset:{off}\ns_mov_b64 exec, -1')
    def row_red(op, v, src=None):
        for sh in (8, 4, 2, 1):
            s_ = src if (src and sh == 8) else v
            a(f'{op}_dpp {v}, {s_}, {s_} row_ror:{sh} row_mask:0xf bank_mask:0xf')
    def loads128(dst, srd, voff, soff, step, fl=''):
        for i in range(8):
            a(f'buffer_load_dwordx4 v[{dst+4*i}:{dst+4*i+3}], {voff}, {srd}, {soff} offen {fl}')
            if i < 7: a(f's_add_u32 {soff}, {soff}, {step}')
    def perms128(dst, src, waits=None):
        for r in range(4):
            if waits is not None: a(waits(r))
            for e in range(8):
                lo = src + 8 * r + (e >> 1); hi = lo + 4
                a(f'v_perm_b32 v{dst + 4*e + r}, v{hi}, v{lo}, {"s57" if e & 1 else "s56"}')
    rd_a = f'ds_read_b128 v[{AOP}:{AOP+3}], v11\nds_read_b128 v[{AOP+4}:{AOP+7}], v31'
    def gemv128(D, B):
        for s in range(2):
            a(f's_waitcnt lgkmcnt({1-s})')
            for e in range(4):
                c = '0' if s == 0 else f'v[{D+4*e}:{D+4*e+3}]'
                a(f'v_mfma_f32_16x16x32_bf16 v[{D+4*e}:{D+4*e+3}], v[{AOP+4*s}:{AOP+4*s+3}], v[{B+16*s+4*e}:{B+16*s+4*e+3}], {c}')
        a(f'v_permlane32_swap_b32 v{D}, v{D+8}\nv_permlane32_swap_b32 v{D+4}, v{D+12}')
        a(f'v_add_f32_dpp v{D}, v{D+8}, v{D} row_ror:8 row_mask:0xf bank_mask:0x3')
        a(f'v_add_f32_dpp v{D}, v{D+4}, v{D+12} row_ror:8 row_mask:0xf bank_mask:0xc')
    def sum7(dst, t, addr):
        for k in range(3): a(f'ds_read2st64_b32 v[{t+2*k}:{t+2*k+1}], {addr} offset0:{1+2*k} offset1:{2+2*k}')
        a(f'ds_read_b32 v{t+6}, {addr} offset:{L_RED+6*256}')
        a(f's_waitcnt lgkmcnt(2)\nv_pk_add_f32 v[{t}:{t+1}], v[{t}:{t+1}], v[{t+2}:{t+3}]\ns_waitcnt lgkmcnt(0)\nv_add_f32 v{t+4}, v{t+4}, v{t+6}')
        a(f'v_pk_add_f32 v[{t}:{t+1}], v[{t}:{t+1}], v[{t+4}:{t+5}]\nv_add_f32 {dst}, v{t}, v{t+1}')
    def silu(d, x, t):
        a(f'v_mul_f32 {t}, {LOG2E | 0x80000000:#x}, {x}\nv_exp_f32 {t}, {t}\nv_add_f32 {t}, 1.0, {t}\nv_rcp_f32 {t}, {t}\nv_mul_f32 {d}, {x}, {t}')
    def ln_tail(x, mean, var, out):
        rnd(var, var); rnd(mean, mean)
        a(f'v_add_f32 {var}, 0x3727c5ac, {var}\nv_sub_f32 {out}, {x}, {mean}')
        rnd(var, var); rnd(out, out)
        a(f'v_sqrt_f32 {var}, {var}'); rnd(var, var)
        a(f'v_rcp_f32 {var}, {var}\nv_mul_f32 {out}, {out}, {var}'); rnd(out, out)
    def get_mode(vt='v2', vz='v3', off=C_M):
        l = lab('gm')
        a(f's_mov_b32 s97, 0\nv_mov_b32 {vz}, 0\n{l}:\nds_read_b32 {vt}, {vz} offset:{off}\ns_add_u32 s97, s97, 1\ns_bitcmp1_b32 s97, 20\ns_cbranch_scc1 L_end')
        a(f's_waitcnt lgkmcnt(0)\nv_readfirstlane_b32 s96, {vt}\ns_cmp_eq_u32 s96, 0\ns_cbranch_scc1 {l}')
    slow = []
    def store_mode(stores, cmp=True):
        l = lab('sm')
        if cmp: a('s_cmp_eq_u32 s96, 2')
        a(f's_cbranch_scc0 {l}s')
        for x in stores: a(x)
        a(f'{l}d:')
        slow.append(f'{l}s:\n' + '\n'.join(x + ' sc1' if x.startswith('buffer') else x for x in stores) + f'\ns_branch {l}d')
    def poll_tag(addr, so1, so2, tmp):
        l = lab('pt')
        a(f's_mov_b32 s97, 0\n{l}:\nbuffer_load_dword v{tmp}, {addr}, s[36:39], {so1} sc1\nbuffer_load_dword v{tmp+1}, {addr}, s[36:39], {so2} sc1')
        cap()
        a(f's_waitcnt vmcnt(0)\nv_xor_b32 v{tmp}, s34, v{tmp}\nv_xor_b32 v{tmp+1}, s34, v{tmp+1}\nv_or_b32 v2, v{tmp}, v{tmp+1}\nv_cmp_ne_u16 vcc, 0, v2\ns_cbranch_vccnz {l}')
        cnt()
    def gather_tag(src, acc, voff, addrs, PD, GAP, mask=None):
        l = lab('g'); n = 4
        def ld(k):
            for i, (so, im) in enumerate(addrs):
                x = src + 8 * k + 2 * i; m = mask is not None and i == n - 1
                if m: a(f's_mov_b32 exec_hi, {mask:#x}')
                a(f'v_mov_b64 v[{x}:{x+1}], 0\nbuffer_atomic_add_x2 v[{x}:{x+1}], {voff}, s[36:39], {so} offen offset:{im} sc0 sc1')
                if m: a('s_mov_b32 exec_hi, -1')
        if mask is not None:
            for k in range(PD): a(f'v_mov_b64 v[{src+8*k+6}:{src+8*k+7}], v[28:29]')
        a('s_mov_b32 s97, 0')
        for d in range(PD):
            ld(d)
            if d < PD - 1: a(f's_sleep {GAP}')
        a(f'{l}:')
        o = acc + 8
        for k in range(PD):
            a(f's_waitcnt vmcnt({n*(PD-1)})')
            for r in range(8): a(f'v_xor_b32 v{acc+r}, v{28+(r&1)}, v{src+8*k+r}')
            a(f'v_or3_b32 v{o}, v{acc}, v{acc+1}, v{acc+2}\nv_or3_b32 v{o+1}, v{acc+3}, v{acc+4}, v{acc+5}\nv_or3_b32 v{o}, v{o}, v{acc+6}, v{acc+7}')
            a(f'v_pk_add_f32 v[{acc}:{acc+1}], v[{acc}:{acc+1}], v[{acc+2}:{acc+3}]\nv_or_b32 v{o}, v{o}, v{o+1}\nv_pk_add_f32 v[{acc+4}:{acc+5}], v[{acc+4}:{acc+5}], v[{acc+6}:{acc+7}]')
            a(f'v_cmp_ne_u32_sdwa vcc, v{o}, 0 src0_sel:BYTE_0 src1_sel:DWORD\nv_pk_add_f32 v[{acc}:{acc+1}], v[{acc}:{acc+1}], v[{acc+4}:{acc+5}]\ns_cbranch_vccz {l}d')
            ld(k)
        cap()
        a(f's_branch {l}\n{l}d:\ns_nop 0')
        a(f'v_permlane32_swap_b32 v{acc}, v{acc+1}\nv_add_f32 v{acc+2}, v{acc}, v{acc+1}\nv_add_f32 v{acc}, v{acc}, v{acc+1}')
        a(f'v_permlane16_swap_b32 v{acc}, v{acc+2}\nv_add_f32 v{acc}, v{acc}, v{acc+2}')
        cnt()
    def tagreg(d, col4):
        a(f'v_lshlrev_b32 {d}, 1, {col4}\nv_bfe_u32 {d}, s30, {d}, 8\ns_mov_b32 s55, 0xffffff00')

    def RED():
        a('s_cmp_eq_u32 s33, 7\ns_barrier')
        for k in range(4): a(f'ds_read2st64_b32 v[{12+2*k}:{13+2*k}], v60 offset0:{1+2*k} offset1:{2+2*k}')
        a('s_waitcnt lgkmcnt(2)\nv_pk_add_f32 v[12:13], v[12:13], v[14:15]\ns_waitcnt lgkmcnt(0)\nv_pk_add_f32 v[16:17], v[16:17], v[18:19]')
        a('v_pk_add_f32 v[12:13], v[12:13], v[16:17]\nv_add_f32 v12, v12, v13')
        a('v_and_or_b32 v63, v12, s55, v62\nbuffer_store_dword v63, v61, s[36:39], s69 offen sc1')
        ts(10)
        a('s_cbranch_scc1 L_end')
        if RSL: a(f's_sleep {RSL}')
        gather_tag(32, 12, 'v9', [('s64', i * 1024) for i in range(4)], PD, GAP)
        ts(11)
        if EXACT: rnd('v12', 'v12'); a('v_mul_f32 v12, v25, v12'); rnd('v12', 'v12'); a('v_add_f32 v12, v24, v12')
        else: a('v_fma_f32 v12, v25, v12, v24')
        a('s_cmp_eq_u32 s96, 2'); rnd('v24', 'v12'); rnd('v22', 'v12')
        a('v_mul_f32 v12, v24, v24\nv_or_b32 v13, s34, v24')
        store_mode(['buffer_store_dword v13, v31, s[36:39], s65 offen'], cmp=False)
        a('v_permlane32_swap_b32 v22, v12\nv_add_f32 v22, v22, v12')
        row_red('v_add_f32', 'v22')
        a('s_mov_b32 exec_lo, 1\ns_mov_b32 exec_hi, 1')
        store_mode(['buffer_store_dwordx2 v[22:23], v6, s[36:39], s66 offen offset:1792'], cmp=False)
        a('s_mov_b64 exec, -1')
        ts(12)
        a('s_cmp_ge_u32 s33, 2\ns_cbranch_scc1 L_epoch')
        gather_tag(96, 12, 'v8', [('s67', 0), ('s67', 2048), ('s68', 0), ('s68', 2048)], PD3, GAP3, mask=0)
        a('v_add_f32_dpp v12, v12, v12 row_ror:8 row_mask:0xf bank_mask:0xf\ns_mov_b64 exec, s[62:63]')
        ts(13)
        if EXACT: rnd('v12', 'v12'); a('v_mul_f32 v12, v26, v12'); rnd('v12', 'v12'); a('v_add_f32 v12, v24, v12')
        else: a('v_fma_f32 v12, v26, v12, v24')
        a('v_cvt_pk_bf16_f32 v12, v12, v12\nglobal_store_short v30, v12, s[24:25]')
        a('s_branch L_end' if TS else 's_endpgm')
        a('L_epoch:\ns_cmp_lg_u32 s2, 82\ns_cbranch_scc1 L_end')
        a('s_mov_b64 exec, 1\nbuffer_store_dword v23, v3, s[36:39], 0 offen sc1\ns_branch L_end')

    a('s_load_dwordx16 s[4:19], s[0:1], 0\ns_load_dwordx8 s[20:27], s[0:1], 64\ns_load_dwordx2 s[28:29], s[0:1], 96')
    if TS: a('s_memrealtime s[98:99]')
    a('s_cmp_ge_u32 s2, 16\ns_cbranch_scc1 L_npf')
    a('s_getpc_b64 s[48:49]\nL_pc:\nv_lshlrev_b32 v2, 7, v0\nv_cmp_gt_u32 vcc, L_last-L_pc, v2\ns_and_b64 exec, exec, vcc\ns_cbranch_execz L_npf2')
    a('global_load_dword v14, v2, s[48:49]\nL_npf2:\ns_mov_b64 exec, -1\nL_npf:')
    a('s_cmp_ge_u32 s2, 256\ns_cbranch_scc1 L_exit')
    a('v_lshrrev_b32 v2, 6, v0\nv_and_b32 v1, 63, v0')
    a('s_and_b32 s31, s2, 7\ns_lshr_b32 s32, s2, 3')
    a('v_readfirstlane_b32 s3, v2')
    a(f's_cmp_gt_u32 s31, {SKIPX}\ns_subb_u32 s33, s31, 0\ns_cmp_eq_u32 s31, {SKIPX}\ns_cselect_b32 s33, 7, s33\ns_cselect_b32 s48, 8, 10\ns_cselect_b32 s42, 0, 0x24c000')
    a('s_cselect_b32 s49, 32, 28\ns_cmp_lt_u32 s32, s48\ns_cselect_b32 s58, 2, 0\ns_cmp_lt_u32 s32, 8\ns_cselect_b32 s58, 1, s58\ns_cmp_ge_u32 s32, s49\ns_cselect_b32 s58, 3, s58')
    a('s_mov_b32 s38, 0x400000\ns_mov_b32 s39, 0x20000\ns_mov_b32 s43, 0x20000\ns_mov_b32 s47, 0x20000\ns_mov_b32 s46, 0x380000')
    a('v_and_b32 v8, 15, v1\nv_lshrrev_b32 v9, 4, v1')
    a('s_cmp_ge_u32 s3, 2\ns_cbranch_scc1 L_aux')
    a('v_lshlrev_b32 v3, 4, v1\nv_mul_u32_u24 v2, 5376, v9\nv_lshl_add_u32 v2, v8, 4, v2')
    a('s_lshl_b32 s51, s32, 1\ns_add_u32 s51, s51, s3\ns_sub_u32 s50, s51, 4\ns_cmp_lt_u32 s32, 8\ns_cselect_b32 s50, s51, s50')
    a(f's_mul_i32 s52, s50, {4*5376}\ns_lshl_b32 s48, s33, 8\ns_add_u32 s52, s52, s48\ns_add_u32 s54, s52, {240*5376}')
    a(f's_lshl_b32 s53, s50, 13\ns_lshl_b32 s48, s31, 10\ns_add_u32 s53, s53, s48\ns_mov_b32 s49, {60*8192}\ns_lshr_b32 s48, s32, 1')
    a('s_waitcnt lgkmcnt(0)')
    a('s_mov_b64 s[40:41], s[22:23]\ns_mov_b64 s[44:45], s[10:11]\ns_cmp_eq_u32 s48, 4\ns_cbranch_scc1 L_s1m')
    a('buffer_load_dwordx4 v[16:19], v2, s[40:43], s52 offen\nbuffer_load_dwordx4 v[16:19], v2, s[40:43], s54 offen')
    for i in range(8):
        a('buffer_load_dwordx4 v[16:19], v3, s[44:47], s53 offen')
        if i < 7: a('s_add_u32 s53, s53, s49')
    a('s_branch L_s2')
    a('L_s1m:\nv_min_u32 v2, 0x370, v3\nglobal_load_dword v16, v2, s[20:21]\nglobal_load_dword v16, v2, s[4:5]\ns_branch L_s2')
    a('L_aux:\nv_mov_b32 v30, 0\nv_lshlrev_b32 v27, 2, v1')
    a('s_sub_u32 s35, s3, 3\ns_lshl_b32 s52, s33, 1\ns_add_u32 s52, s52, s32\ns_sub_u32 s52, s52, 8')
    a('s_waitcnt lgkmcnt(0)')
    if TS: a('v_writelane_b32 v0, s98, 0')
    a('s_mov_b64 s[36:37], s[28:29]')
    a('s_cmp_lg_u32 s3, 2\ns_cbranch_scc1 L_a1\ns_mov_b64 exec, 1\nbuffer_load_dword v17, v30, s[36:39], 0 offen sc1\ns_mov_b64 exec, -1\ns_branch L_svc')
    a('L_a1:\ns_cmp_eq_u32 s35, 7\ns_cbranch_scc1 L_finx')
    a('s_cmp_lg_u32 s58, 2\ns_cbranch_scc1 L_gdone')
    a('L_gmod:')
    a('s_lshl_b32 s50, s35, 7\nv_lshl_add_u32 v2, v1, 1, s50\nglobal_load_ushort v10, v2, s[20:21]')
    a('s_movk_i32 s48, 5376\ns_mov_b32 s42, 0x24c000\ns_mov_b64 s[40:41], s[22:23]')
    a(f's_mul_i32 s49, s35, {64*5376}\ns_lshl_b32 s50, s52, 7\ns_add_u32 s49, s49, s50')
    a('L_gload:')
    a('s_lshl_b32 s50, s48, 3\nv_lshrrev_b32 v2, 3, v1\nv_mul_u32_u24 v2, s50, v2\nv_and_b32 v3, 7, v1\nv_lshl_add_u32 v2, v3, 4, v2')
    loads128(RAW, 's[40:43]', 'v2', 's49', 's48')
    a('s_cmp_lg_u32 s58, 2\ns_cbranch_scc1 L_grel\ns_branch L_gdone')
    a('L_s2:')
    if TS: a('v_writelane_b32 v0, s98, 0')
    ts(7)
    oW, oM = 0, 28 * cW; oS = oM + 4 * cM; oF = oS + 16 * cS; oR = oF + 8 * cF
    a('s_sub_u32 s68, s32, 10\ns_cmp_lt_u32 s68, 14\ns_cselect_b32 s70, 16, 0\ns_cmp_ge_u32 s68, 7\ns_cselect_b32 s49, 1, 0\ns_mul_i32 s48, s49, 7\ns_sub_u32 s68, s68, s48')
    a(f's_lshl_b32 s48, s31, 1\ns_add_u32 s48, s48, s49\ns_lshl_b32 s48, s48, 5\ns_movk_i32 s69, 896')
    a(f's_mov_b64 s[64:65], s[12:13]\ns_mov_b32 s66, 0x380000\ns_mov_b32 s67, 0x20000\ns_lshr_b32 s49, s32, 2\ns_cmp_lg_u32 s49, 6\ns_cbranch_scc1 L_dm2')
    a(f's_lshl_b32 s68, s33, 2\ns_add_u32 s68, s68, s32\ns_sub_u32 s68, s68, 24\ns_mov_b32 s48, 0\ns_movk_i32 s69, 3584')
    a(f's_mov_b64 s[64:65], s[16:17]\ns_mov_b32 s66, 0x188000\ns_cmp_lt_u32 s33, 7\ns_cselect_b32 s70, {NE}, 0')
    a('L_dm2:\ns_add_u32 s48, s48, s3\ns_mul_i32 s48, s48, s69\ns_lshl_b32 s48, s48, 3\ns_lshl_b32 s68, s68, 7\ns_add_u32 s68, s68, s48')
    a('v_lshrrev_b32 v21, 3, v1\nv_mul_u32_u24 v21, s69, v21\nv_and_b32 v2, 7, v1\nv_lshl_add_u32 v21, v2, 4, v21\ns_lshl_b32 s69, s69, 4')
    a(f's_lshl_b32 s71, s3, 10\ns_add_u32 m0, s71, {L_WO}')
    a(f's_movk_i32 s61, {oS}\ns_mov_b32 s62, {cS}\ns_cmp_ge_u32 s32, 8\ns_cselect_b32 s60, 4, 16\ns_cselect_b32 s61, {oM - 16}, s61\ns_cselect_b32 s62, {cM}, s62')
    a(f's_cmp_ge_u32 s32, 10\ns_cselect_b32 s60, 28, s60\ns_cselect_b32 s61, {oW - 20}, s61\ns_cselect_b32 s62, {cW}, s62')
    a(f's_cmp_ge_u32 s32, 24\ns_cselect_b32 s60, 8, s60\ns_cselect_b32 s61, {oF - 48}, s61\ns_cselect_b32 s62, {cF}, s62')
    a(f's_cmp_ge_u32 s32, 28\ns_cselect_b32 s61, {oR - 56}, s61\ns_cselect_b32 s62, {cR}, s62\ns_cmp_eq_u32 s33, 7\ns_cselect_b32 s62, 0, s62')
    a(f's_add_u32 s61, s61, s51\ns_mul_i32 s52, s61, {2*5376}\ns_lshl_b32 s48, s33, 9\ns_add_u32 s52, s52, s48\ns_add_u32 s52, s52, 1792\ns_mul_i32 s60, s60, {2*5376}')
    a('v_lshrrev_b32 v2, 5, v1\nv_and_b32 v10, 31, v1\ns_lshl_b32 s48, s3, 1\nv_mul_u32_u24 v20, 5376, v2\nv_lshl_add_u32 v20, v10, 4, v20')
    a('v_xor_b32 v10, v2, v10\nv_xor_b32 v10, s48, v10\nv_lshlrev_b32 v2, 9, v2\nv_lshl_add_u32 v10, v10, 4, v2\nv_add_u32 v10, s71, v10')
    a('v_xor_b32 v11, 64, v10\nv_xor_b32 v12, 0x80, v10\nv_xor_b32 v13, 0xc0, v10')
    a(f's_lshl_b32 s54, s31, 6\ns_add_u32 s54, s54, s51\ns_lshl_b32 s54, s54, 10\ns_add_u32 s54, s54, {WS_O}\ns_mov_b64 s[36:37], s[28:29]')
    a('s_lshl_b32 s50, s31, 25\ns_lshl_b32 s49, s32, 16\ns_add_u32 s50, s50, s49\ns_add_u32 s50, s50, 0x1e00000')
    a('s_add_u32 s72, s6, s50\ns_addc_u32 s73, s7, 0\ns_add_u32 s44, s8, s50\ns_addc_u32 s45, s9, 0\ns_mov_b32 s74, 0x10000\ns_mov_b32 s75, 0x20000\ns_mov_b32 s46, 0x10000')
    a(f's_mul_i32 s51, s32, {AJ}\ns_mul_i32 s49, s31, {AG}\ns_add_u32 s51, s51, s49\ns_mov_b32 s59, 0xffff\ns_and_b32 s51, s51, s59\ns_mov_b32 s53, 0')
    a(f's_cmp_eq_u32 s58, 3\ns_cselect_b32 s55, {PRER}, {HIT}\ns_cmp_eq_u32 s58, 1\ns_cselect_b32 s55, {HIT1}, s55')
    a('s_cmp_ge_u32 s32, 10\ns_cbranch_scc1 L_u3c')
    a(f's_waitcnt vmcnt({GW})\ns_barrier\ns_cmp_lg_u32 s58, 1\ns_cbranch_scc1 L_u3c')
    spin_lds(C_R, 7, 'v4', 'v5')
    a('s_branch L_u3c')
    a(f'L_u3l:\ns_waitcnt vmcnt({WD-1})\nbuffer_load_dwordx4 v[16:19], v20, s[40:43], s52 offen\ns_add_u32 s52, s52, s60\ns_sub_u32 s62, s62, 1\nL_u3c:\ns_cmp_lg_u32 s62, 0\ns_cbranch_scc1 L_u3l')
    a('s_branch L_dmc')
    a(f'L_dml:\ns_waitcnt vmcnt({WD-1})\nbuffer_load_dwordx4 v21, s[64:67], s68 offen {NTD} lds\ns_add_u32 s68, s68, s69\ns_add_u32 m0, m0, 2048\ns_sub_u32 s70, s70, 1\nL_dmc:\ns_cmp_lg_u32 s70, 0\ns_cbranch_scc1 L_dml')
    a(f's_add_u32 m0, s71, {L_K}')
    def kbody(w):
        for k in range(4):
            a(f's_waitcnt vmcnt({w-1})\nbuffer_load_dwordx4 v{10+k}, s[72:75], s51 offen {NTS} lds')
            a(f's_addk_i32 s51, 2048\ns_add_u32 m0, m0, 2048\ns_and_b32 s51, s51, s59')
    a('L_kloop:')
    a('s_cmp_eq_u32 s53, s55\ns_cbranch_scc1 L_kd\nL_kgo2:')
    kbody(W1)
    a('s_add_u32 s53, s53, 1\ns_cmp_lt_u32 s53, 8\ns_cbranch_scc1 L_kloop')
    ts(1)
    a(f'v_lshlrev_b32 v8, 4, v8\nv_mul_u32_u24 v1, 272, v9\nv_add_u32 v1, v1, v8\ns_lshl_b32 s48, s3, 8')
    a('v_lshl_add_u32 v2, v9, 9, v8\nv_add_u32 v2, s48, v2\nv_mov_b32 v152, 0\nv_mov_b32 v153, 1')
    a('v_mov_b64 v[4:5], 0\nv_mov_b64 v[6:7], 0')
    VB = 24
    assert W2 - 1 < 32 - N3 and 9 <= W2 <= 16
    sig = lambda off: signal(off, 'v152', 'v153', init=False)
    klev = {max(0, W2 - 1 - 4 * (3 - q)): q for q in range(4)} if TILE else {W2 - 1: 3}
    for i in range(32):
        w = W2 if i < 32 - N3 else W3
        a(f's_waitcnt vmcnt({w-1})')
        if i == QSTEP: sig(C_QG)
        if i == MLSTEP: sig(C_ML)
        if i in klev: sig(C_K + 4 * klev[i])
        if i == W2 - 1: ts(2)
        a(f'buffer_load_dwordx4 v[{VB+4*i}:{VB+4*i+3}], v2, s[44:47], s51 offen {NTS}')
        if i < 31: a('s_addk_i32 s51, 2048\ns_and_b32 s51, s51, s59')
    ts(3)
    get_mode('v12', 'v10', C_CL)
    spin_lds(C_P, 8, 'v12', 'v10')
    ts(4)
    ring = [8, 12, 16, 20, 156, 160, 164][:RING]; D_ = RING - 1
    for k in range(D_): a(f'ds_read_b128 v[{ring[k]}:{ring[k]+3}], v1 offset:{L_P + k*1088}')
    WL = max(W2, W3)
    a('s_cmp_eq_u32 s96, 2')
    for i in range(32):
        if i + D_ < 32:
            k = ring[(i + D_) % RING]
            a(f'ds_read_b128 v[{k}:{k+3}], v1 offset:{L_P + (i+D_)*1088}')
        lg = min(D_, 31 - i)
        if 31 - i < WL: a(f's_waitcnt vmcnt({31-i}) lgkmcnt({lg})')
        else: a(f's_waitcnt lgkmcnt({lg})')
        k = ring[i % RING]
        a(f'v_mfma_f32_16x16x32_bf16 v[4:7], v[{k}:{k+3}], v[{VB+4*i}:{VB+4*i+3}], v[4:7]')
        if 31 - i == G2: sig(C_V2)
    a('s_nop 6')
    store_mode(['buffer_store_dwordx4 v[4:7], v3, s[36:39], s54 offen'], cmp=False)
    sig(C_O)
    ts(5)
    a('s_branch L_end')
    a('L_kd:\ns_cmp_lt_u32 s32, 10\ns_cbranch_scc1 L_kd1\ns_barrier\nL_kd1:')
    signal(C_D, 'v4', 'v5')
    ts(6)
    a('s_cmp_lg_u32 s58, 3\ns_cbranch_scc1 L_kgo2')
    spin_lds(C_R, 7, 'v4', 'v5')
    a('s_branch L_kgo2')

    a('L_gdone:')
    a('s_mov_b32 s56, 0x05040100\ns_mov_b32 s57, 0x07060302')
    a(f's_lshl_b32 s26, s35, 7\ns_add_u32 s26, s26, {L_STG}')
    a(f'v_lshrrev_b32 v2, 3, v1\nv_lshl_add_u32 v2, v2, 4, s26\nv_mov_b32 v3, {L_ZERO}\nv_and_b32 v4, 4, v1\nv_cmp_eq_u32 vcc, 0, v4')
    a('v_cndmask_b32 v11, v3, v2, vcc\nv_cndmask_b32 v31, v2, v3, vcc')
    a('v_and_b32 v2, 7, v1\nv_lshlrev_b32 v30, 5, v2\nv_and_b32 v2, 16, v1\nv_add_u32 v30, v30, v2\nv_lshrrev_b32 v2, 5, v1\nv_lshl_add_u32 v30, v2, 3, v30')
    a('v_bfe_u32 v2, v1, 3, 1\nv_lshl_add_u32 v30, v2, 2, v30')
    a('v_lshl_add_u32 v29, v1, 1, s26\ns_lshl_b32 s27, s35, 8\nv_add_u32 v28, s27, v30')
    a(f's_mul_i32 s48, s35, 4352\nv_mul_u32_u24 v2, 272, v9\nv_lshl_add_u32 v2, v8, 4, v2\nv_add_u32 v2, s48, v2')
    a('v_mov_b32 v12, 0\nv_mov_b32 v13, 0\nv_mov_b32 v14, 0\nv_mov_b32 v15, 0')
    for k in range(4): a(f'ds_write_b128 v2, v[12:15] offset:{L_P + k*1088}')
    a('s_movk_i32 s48, 0x2000\ns_mov_b32 s42, 0x380000\ns_mov_b64 s[40:41], s[10:11]')
    a('s_lshl_b32 s49, s31, 3\ns_add_u32 s49, s49, s32\ns_lshl_b32 s49, s49, 7\ns_lshl_b32 s50, s35, 19\ns_add_u32 s49, s49, s50')
    a('s_barrier')
    a(f'ds_read_b32 v3, v12 offset:{L_H}\ns_waitcnt lgkmcnt(0)\nv_readfirstlane_b32 s30, v3\ns_and_b32 s34, s30, 0xffff')
    a('s_cmp_eq_u32 s58, 0\ns_cbranch_scc1 L_qfetch\ns_cmp_eq_u32 s58, 3\ns_cbranch_scc1 L_early')
    a('s_cmp_eq_u32 s35, 7\ns_cbranch_scc1 L_fin')
    a('s_cmp_eq_u32 s58, 1\ns_cbranch_scc1 L_gload')
    a('L_gsilu:')
    a('s_waitcnt vmcnt(8)\nv_lshlrev_b32 v10, 16, v10')
    silu('v10', 'v10', 'v2')
    a(f'v_cvt_pk_bf16_f32 v2, v10, v10\nds_write_b16 v29, v2\nds_read_b128 v[{AOP}:{AOP+3}], v11\nds_read_b128 v[{AOP+4}:{AOP+7}], v31')
    a('L_perm:')
    perms128(BOP, RAW, waits=lambda r: f's_waitcnt vmcnt({6 - 2*r})')
    ts(1)
    a('s_cmp_lg_u32 s58, 1\ns_cbranch_scc1 L_fmm')
    a(f's_add_u32 s49, s27, {WS_H}')
    spin_lds(C_D, 2)
    poll_tag('v27', 's49 offen', 's49 offen offset:1792', 4)
    a('v_add_f32 v10, v4, v5')
    ts(2)
    a(f'v_cvt_pk_bf16_f32 v2, v10, v10\nds_write_b16 v29, v2\nds_read_b128 v[{AOP}:{AOP+3}], v11\nds_read_b128 v[{AOP+4}:{AOP+7}], v31')
    a('L_fmm:\nv_mov_b32 v2, 0\nv_mov_b32 v3, 1')
    gemv128(DD, BOP)
    a(f'ds_write_b32 v28, v{DD} offset:{L_RED}')
    signal(C_G, init=False)
    a('s_branch L_qfetch')
    a('L_early:')
    a('s_lshl_b32 s52, s33, 2\ns_add_u32 s52, s52, s32\ns_sub_u32 s52, s52, 14')
    a('s_cmp_eq_u32 s35, 7\ns_cbranch_scc1 L_finm')
    spin_lds(C_D, 2)
    a('s_branch L_gmod')
    a('L_grel:')
    signal(C_R)
    a('s_cmp_eq_u32 s58, 1\ns_cbranch_scc1 L_perm\ns_branch L_gsilu')
    a('L_finx:')
    a('s_cmp_eq_u32 s58, 2\ns_cbranch_scc1 L_finx2\ns_cmp_lg_u32 s58, 1\ns_cbranch_scc1 L_gdone')
    a(f's_lshl_b32 s53, s31, 3\ns_add_u32 s53, s53, s32\ns_lshl_b32 s53, s53, 12\ns_add_u32 s53, s53, {WS_Q}\nv_lshlrev_b32 v2, 6, v1')
    a('buffer_load_dword v16, v2, s[36:39], s53 offen sc1\ns_branch L_gdone')
    a('L_finx2:\ns_cmp_lt_u32 s52, 7\ns_cbranch_scc1 L_gdone')
    a('v_lshlrev_b32 v3, 1, v1\ns_sub_u32 s48, s52, 7\ns_lshl_b32 s48, s48, 7\nv_add_u32 v2, s48, v3')
    for k in range(7): a(f'global_load_ushort v{16+k}, v3, s[4:5] offset:{128*k}')
    a('global_load_ushort v23, v2, s[4:5]\ns_branch L_gdone')
    a('L_fin:')
    a('s_cmp_eq_u32 s58, 1\ns_cbranch_scc1 L_finq\ns_cmp_lt_u32 s52, 7\ns_cbranch_scc1 L_finm')
    a('s_waitcnt vmcnt(0)')
    for k in range(8): a(f'v_lshlrev_b32 v{16+k}, 16, v{16+k}')
    def wave_sum(v):
        row_red('v_add_f32', v)
        a(f'v_mov_b32 v5, {v}\nv_permlane16_swap_b32 {v}, v5\nv_add_f32 {v}, {v}, v5')
        a(f'v_mov_b32 v5, {v}\nv_permlane32_swap_b32 {v}, v5\nv_add_f32 {v}, {v}, v5')
    a('v_add_f32 v24, v16, v17\nv_add_f32 v25, v18, v19\nv_add_f32 v26, v20, v21\nv_add_f32 v24, v24, v25\nv_add_f32 v26, v26, v22\nv_add_f32 v24, v24, v26')
    wave_sum('v24')
    a(f'v_mul_f32 v24, {INV448:#x}, v24')
    for k in range(7): a(f'v_sub_f32 v{16+k}, v{16+k}, v24')
    a('v_mul_f32 v25, v16, v16')
    for k in range(1, 7): a(f'v_fmac_f32 v25, v{16+k}, v{16+k}')
    wave_sum('v25')
    a(f'v_mul_f32 v25, {INV448:#x}, v25')
    ln_tail('v23', 'v24', 'v25', 'v23')
    a('L_finm:')
    a(f's_lshl_b32 s48, s52, 8\ns_add_u32 s48, s48, {WS_MOD}\ns_sub_u32 s49, s52, 7')
    ts(1)
    spin_lds(C_G, 7)
    sum7('v4', 16, 'v27')
    rnd('v4', 'v4')
    a('s_cmp_ge_u32 s49, 7\ns_cbranch_scc1 L_pubm')
    a('v_add_f32 v4, 1.0, v4'); rnd('v4', 'v4'); a('v_mul_f32 v4, v23, v4'); rnd('v4', 'v4')
    a('L_pubm:\nv_or_b32 v4, s34, v4\nbuffer_store_dword v4, v27, s[36:39], s48 offen sc1')
    ts(3)
    a('s_branch L_qfetch')
    a('L_finq:')
    a('v_lshrrev_b32 v6, 5, v1\nv_and_b32 v7, 1, v9\nv_lshlrev_b32 v12, 3, v8\nv_lshl_add_u32 v12, v6, 7, v12\nv_lshl_add_u32 v12, v7, 2, v12')
    a('v_lshlrev_b32 v13, 2, v8\nv_lshl_add_u32 v13, v6, 6, v13\nv_lshlrev_b32 v14, 3, v8\nv_lshl_add_u32 v14, v6, 2, v14\nv_add_u32 v14, 0x80, v14')
    a('v_mov_b32_dpp v13, v14 quad_perm:[0,1,2,3] row_mask:0xa bank_mask:0xf')
    a('v_mov_b32 v6, 0\nv_writelane_b32 v6, s30, 16\ns_waitcnt vmcnt(0)')
    get_mode()
    ts(1)
    spin_lds(C_G, 7)
    sum7('v4', 16, 'v12')
    a('v_mov_b32 v5, v4\nv_permlane16_swap_b32 v4, v5\nv_cvt_pk_bf16_f32 v4, v4, v5')
    row_red('v_xor_b32', 'v5', 'v4')
    a('v_xor_b32_dpp v4, v5, v6 quad_perm:[0,1,2,3] row_mask:0xa bank_mask:0xf')
    store_mode([f'buffer_store_dword v4, v13, s[36:39], s53 offen offset:{r*256}' for r in range(R)])
    ts(3)
    a('L_qfetch:')
    a('v_lshrrev_b32 v4, 3, v8\nv_mul_u32_u24 v4, 576, v4\nv_lshl_add_u32 v4, v9, 4, v4')
    a(f's_lshl_b32 s49, s35, 13\ns_add_u32 s49, s49, {L_K}\nv_xor_b32 v12, v8, v9\nv_lshlrev_b32 v12, 4, v12\nv_lshl_add_u32 v12, v8, 9, v12\nv_add_u32 v12, s49, v12')
    a('v_xor_b32 v13, 64, v12\nv_xor_b32 v14, 0x80, v12\nv_xor_b32 v15, 0xc0, v12')
    a('v_lshrrev_b32 v6, 5, v1\nv_lshlrev_b32 v7, 2, v6')
    a(f's_mul_i32 s49, s35, 4352\nv_mul_u32_u24 v24, 272, v8\nv_lshl_add_u32 v24, v6, 7, v24\nv_and_b32 v10, 1, v9\nv_mul_u32_u24 v10, 72, v10\nv_add3_u32 v24, v24, v10, s49')
    a('s_lshl_b32 s49, s35, 2\nv_lshl_add_u32 v10, v6, 6, s49')
    first = min(klev.values())
    a(f's_max_u32 s49, s49, {16 + 4*first}\nv_mov_b32 v26, s49')
    a('s_lshr_b32 s49, s35, 2\ns_lshl_b32 s49, s49, 6\ns_lshl_b32 s50, s35, 7\ns_add_u32 s49, s49, s50\nv_lshl_add_u32 v5, v9, 4, s49')
    a(f's_lshl_b32 s48, s31, 3\ns_add_u32 s48, s48, s35\ns_lshl_b32 s48, s48, 4\ns_getreg_b32 s49, hwreg(HW_REG_HW_ID, 8, 1)\ns_add_u32 s49, s49, s48\ns_lshl_b32 s49, s49, 8\ns_add_u32 s49, s49, {WS_Q}')
    a('s_add_u32 s94, s28, s49\ns_addc_u32 s95, s29, 0')
    spin_lds(C_QG, 2)
    ts(4)
    if ABL & 1:
        for k in range(60, 92): a(f's_mov_b32 s{k}, 0')
        a('s_branch L_qok')
    a('s_mov_b32 s97, 0\nL_qp:\ns_load_dwordx16 s[60:75], s[94:95], 0\ns_load_dwordx16 s[76:91], s[94:95], 64\ns_load_dwordx2 s[92:93], s[94:95], 128')
    a('L_qc:\ns_waitcnt lgkmcnt(0)')
    for k in range(16): a(f's_xor_b64 s[92:93], s[92:93], s[{60+2*k}:{61+2*k}]')
    a('s_xor_b32 s92, s92, s93\ns_cmp_eq_u32 s92, s30\ns_cbranch_scc1 L_qok')
    a(f's_add_u32 s97, s97, 1\ns_cmp_ge_u32 s97, {R // 2}\ns_cbranch_scc1 L_qg\ns_sleep {SLQ}\ns_add_u32 s94, s94, 512\ns_addc_u32 s95, s95, 0\ns_cmp_lt_u32 s97, 5\ns_cbranch_scc1 L_qp\ns_sleep {SLQ2}\ns_branch L_qp\nL_qok:')
    slow.append('L_qg:\ns_bitcmp1_b32 s97, 16\ns_cbranch_scc1 L_end\nbuffer_load_dword v2, v27, s[36:39], s49 offen sc1\ns_waitcnt vmcnt(0)\n' + '\n'.join(f'v_readlane_b32 s{60+k}, v2, {k}' for k in range(34)) + '\ns_branch L_qc')
    cnt()
    for kq in range(4):
        if kq == 1: a('s_mov_b32 exec_lo, 0xffff0000')
        if kq == 2: a('s_mov_b32 exec_lo, 0')
        if kq == 3: a('s_mov_b32 exec_hi, 0xffff0000')
        for s in range(2):
            for h in range(2):
                b = 60 + 16 * s + 4 * kq + 2 * h
                a(f'v_mov_b64 v[{AOP+4*s+2*h}:{AOP+4*s+2*h+1}], s[{b}:{b+1}]')
    a('s_mov_b32 exec_lo, 0x10001\ns_mov_b32 exec_hi, 0x10001')
    a(f'ds_write_b128 v5, v[{AOP}:{AOP+3}] offset:{L_Q}\nds_write_b128 v5, v[{AOP+4}:{AOP+7}] offset:{L_Q+64}\nv_mov_b32 v5, 1\ns_mov_b64 exec, 1\nds_add_u32 v3, v5 offset:{C_Q}\ns_mov_b64 exec, -1')
    ts(5)
    rq = '\n'.join(f'ds_read_b128 v[{32+4*s}:{35+4*s}], v4 offset:{L_Q + 64*s}' for s in range(8))
    rk = '\n'.join(f'ds_read_b128 v[{64+4*s}:{67+4*s}], v{12 + (s & 3)} offset:{(s >> 2) * 256}' for s in range(8))
    a(f'ds_read_b32 v2, v26 offset:{C_K - 16}\ns_waitcnt lgkmcnt(0)\nv_cmp_ne_u32 vcc, 2, v2\ns_cbranch_vccnz L_kl')
    a(rk); spin_lds(C_Q, 8); ts(6); a(rq); a('s_branch L_qk\nL_kl:')
    spin_lds(C_Q, 8); a(rq); spin_lds(C_K - 16, 2, addr='v26'); ts(6); a(rk); a('L_qk:')
    for s in range(8):
        a(f's_waitcnt lgkmcnt({7-s})')
        a(f'v_mfma_f32_16x16x32_bf16 v[16:19], v[{32+4*s}:{35+4*s}], v[{64+4*s}:{67+4*s}], {"0" if s == 0 else "v[16:19]"}')
    if not NOSC: rnd('v16', 'v16')
    a('v_mul_f32 v16, 0x3d800000, v16')
    row_red('v_max_f32', 'v17', 'v16')
    if NOSC: a('v_and_b32 v17, 0xffff0000, v17')
    a(f's_mov_b32 exec_lo, 1\ns_mov_b32 exec_hi, 1\nds_max_f32 v7, v17 offset:{L_MX}\ns_mov_b32 exec_hi, 0\nds_add_u32 v3, v5 offset:{C_MX}\ns_mov_b64 exec, -1')
    a(f's_mov_b32 s97, 0\nL_mx:\nds_read_b32 v2, v3 offset:{C_MX}\nds_read_b32 v17, v7 offset:{L_MX}\ns_add_u32 s97, s97, 1\ns_bitcmp1_b32 s97, 20\ns_cbranch_scc1 L_end')
    a('s_waitcnt lgkmcnt(0)\nv_cmp_ne_u32 vcc, 8, v2\nv_sub_f32 v18, v16, v17\ns_cbranch_vccnz L_mx')
    a(f'v_mul_f32 v16, {LOG2E:#x}, v18\nv_exp_f32 v16, v16\nv_cvt_pk_bf16_f32 v18, v16, v16')
    for r, sh in enumerate((8, 4, 2, 1)):
        a(f'ds_write_b16 v24, v18 offset:{L_P + 18*r}\nv_add_f32_dpp v16, v16, v16 row_ror:{sh} row_mask:0xf bank_mask:0xf')
    a(f's_mov_b32 exec_lo, 1\ns_mov_b32 exec_hi, 1\nds_write_b32 v10, v16 offset:{L_LSUM}\ns_mov_b32 exec_hi, 0\nds_add_u32 v3, v5 offset:{C_P}\ns_mov_b64 exec, -1')
    ts(7)
    a('s_sub_u32 s52, s32, 10\ns_cmp_lt_u32 s52, 14\ns_cbranch_scc1 L_wo')
    a('s_cmp_eq_u32 s33, 7\ns_cbranch_scc1 L_end')
    a('s_cmp_lt_u32 s52, 18\ns_cbranch_scc1 L_ffn')
    a('s_sub_u32 s53, s32, 18\ns_cmp_lt_u32 s32, 10\ns_cselect_b32 s53, s32, s53')
    a(f's_mov_b32 s42, {0 if ABL & 2 else 0x188000}\ns_lshl_b32 s48, s53, 2\ns_add_u32 s48, s48, s35\ns_cmp_lt_u32 s35, 4\ns_cbranch_scc1 L_hw1')
    a(f's_sub_u32 s48, s48, 4\ns_lshl_b32 s48, s48, 12\ns_mul_i32 s49, s33, {256*896}\ns_add_u32 s48, s48, s49\nv_lshlrev_b32 v4, 4, v1\ns_mov_b64 s[40:41], s[18:19]\ns_movk_i32 s49, 1024\ns_branch L_hw2')
    a(f'L_hw1:\ns_mul_i32 s48, s48, {2*3584}\ns_lshl_b32 s49, s33, 9\ns_add_u32 s48, s48, s49')
    a(f'v_mul_u32_u24 v4, 3584, v6\nv_and_b32 v5, 31, v1\nv_lshl_add_u32 v4, v5, 4, v4\ns_mov_b64 s[40:41], s[16:17]\ns_mov_b32 s49, {56*2*3584}\nL_hw2:')
    spin_lds(HG, 2)
    for i in range(4): a('buffer_load_dwordx4 v[16:19], v4, s[40:43], s48 offen\ns_add_u32 s48, s48, s49')
    a('s_branch L_end')
    a('L_svc:')
    a('v_lshrrev_b32 v6, 5, v1\nv_lshlrev_b32 v7, 2, v6')
    a(f's_lshl_b32 s50, s31, 12\ns_add_u32 s50, s50, {WS_ML}\ns_lshl_b32 s48, s32, 7\ns_add_u32 s48, s48, s50')
    a('v_and_b32 v4, 3, v1\nv_lshlrev_b32 v4, 5, v4\nv_lshl_add_u32 v4, v6, 4, v4\nv_mov_b32 v23, 0')
    a(f'v_lshlrev_b32 v5, 2, v8\nv_lshl_add_u32 v5, v6, 6, v5\nv_lshlrev_b32 v10, 3, v1\ns_lshl_b32 s51, s31, 8\ns_add_u32 s51, s51, {WS_HELLO}\ns_getreg_b32 s52, hwreg(HW_REG_XCC_ID, 0, 4)')
    a('s_cmp_lg_u32 s32, 10\ns_cbranch_scc1 L_sv1\ns_mov_b32 exec_hi, 0\nbuffer_load_dwordx2 v[12:13], v10, s[36:39], s51 offen sc1\nbuffer_load_dwordx2 v[12:13], v10, s[36:39], s51 offen offset:2048 sc1\ns_mov_b64 exec, -1\nL_sv1:')
    a(f's_lshl_b32 s53, s31, 5\ns_add_u32 s53, s53, s32\ns_lshl_b32 s53, s53, 11\ns_add_u32 s53, s53, {WS_O}\nv_lshlrev_b32 v11, 6, v1')
    a(f's_mov_b32 s49, 0xff800000\nv_writelane_b32 v30, s49, 8\nv_writelane_b32 v30, s49, 9\nv_mov_b64 v[32:33], -1\nv_mov_b64 v[34:35], -1\nv_and_b32 v2, 0x7c, v27\nds_write_b32 v2, v32 offset:{L_WT}')
    a('s_waitcnt vmcnt(0)\nv_readfirstlane_b32 s30, v17\ns_and_b32 s49, s30, 0x7f7f7f7f\ns_add_u32 s49, s49, 0x01010102\ns_and_b32 s30, s30, 0x80808080\ns_xor_b32 s30, s30, s49\ns_or_b32 s30, s30, 1')
    a('v_writelane_b32 v30, s30, 10\ns_and_b32 s34, s30, 0xffff\nds_write_b32 v27, v30')
    a('v_mov_b32 v14, s30\nv_mov_b32 v15, s52\ns_lshl_b32 s49, s32, 3\ns_add_u32 s49, s49, s51\ns_mov_b64 exec, 1')
    a('buffer_store_dwordx2 v[14:15], v10, s[36:39], s49 offen\ns_mov_b64 exec, -1\ns_waitcnt lgkmcnt(0)')
    ts(1)
    a('s_barrier')
    ts(2)
    spin_lds(C_D, 2)
    a('L_sv2:\ns_mov_b64 exec, 15\nbuffer_load_dword v16, v4, s[36:39], s48 offen sc1\ns_mov_b32 exec_lo, -1\nbuffer_load_dword v16, v11, s[36:39], s53 offen sc1')
    a('s_mov_b32 s97, 0\ns_mov_b32 s96, 1\nL_hel:\nbuffer_load_dwordx2 v[12:13], v10, s[36:39], s51 offen sc1')
    a(f's_add_u32 s97, s97, 1\ns_waitcnt vmcnt(0)\nv_cmp_ne_u64 vcc, v[12:13], v[14:15]\ns_cbranch_vccz L_hel1\ns_cmp_lt_u32 s97, {HTRY}\ns_cbranch_scc1 L_hel\ns_branch L_hel2')
    a(f'L_hel1:\ns_mov_b32 s96, {2 if FAST else 1}\nL_hel2:\ns_mov_b64 exec, -1')
    if TS: a('s_lshl_b32 s97, s97, 4\ns_add_u32 s97, s97, s96\nv_writelane_b32 v0, s97, 14')
    a(f'v_mov_b32 v2, s96\nds_write_b32 v23, v2 offset:{C_M}\nv_mov_b32 v22, s30\nv_lshlrev_b32 v11, 4, v1')
    ts(3)
    store_mode(['buffer_store_dwordx4 v[32:35], v11, s[36:39], s53 offen', 'buffer_store_dwordx4 v[32:35], v11, s[36:39], s53 offen offset:1024',
                's_waitcnt vmcnt(0)', 's_mov_b64 exec, 1', 'buffer_store_dwordx2 v[14:15], v10, s[36:39], s49 offen offset:2048'])
    a(f'ds_write_b32 v23, v2 offset:{C_CL}\ns_mov_b64 exec, -1')
    ts(4)
    a(f's_mov_b32 s97, 0\nL_sp:\nds_read_b32 v2, v23 offset:{C_P}\nds_read_b32 v21, v5 offset:{L_LSUM}\nds_read_b32 v20, v7 offset:{L_MX}'); cap(20)
    a('s_waitcnt lgkmcnt(0)\nv_cmp_ne_u32 vcc, 8, v2\nv_or_b32 v20, s34, v20\ns_cbranch_vccnz L_sp\ns_cmp_eq_u32 s96, 2')
    row_red('v_add_f32', 'v21')
    a('s_mov_b32 exec_lo, 15\ns_mov_b32 exec_hi, 15')
    store_mode(['buffer_store_dwordx4 v[20:23], v4, s[36:39], s48 offen'], cmp=False)
    a('s_mov_b64 exec, -1')
    ts(8)
    a('s_sub_u32 s53, s32, 10\ns_cmp_ge_u32 s53, 14\ns_cbranch_scc1 L_end')
    a('s_cmp_ge_u32 s53, 7\ns_cselect_b32 s48, 16, 0\ns_add_u32 s50, s50, s48\nv_lshlrev_b32 v11, 7, v1')
    a('v_and_b32 v7, 7, v1\nv_lshrrev_b32 v5, 3, v1\nv_lshlrev_b32 v4, 4, v7\nv_lshl_add_u32 v4, v5, 2, v4')
    a(f's_cmp_ge_u32 s53, 7\ns_cselect_b32 s48, 7, 0\ns_addc_u32 s69, s31, s31\ns_sub_u32 s48, s53, s48\ns_lshl_b32 s48, s48, 4\ns_add_u32 s69, s69, s48\ns_lshl_b32 s69, s69, 8\ns_add_u32 s69, s69, {WS_T2}')
    a('v_lshlrev_b32 v60, 5, v7\nv_and_b32 v2, 16, v1\nv_add_u32 v60, v60, v2\nv_lshl_add_u32 v60, v6, 3, v60\nv_and_b32 v2, 1, v5\nv_lshl_add_u32 v60, v2, 2, v60\nv_mov_b32 v61, v27')
    tagreg('v62', 'v61')
    a('s_lshr_b32 s60, s53, 1\ns_and_b32 s61, s53, 1\ns_lshl_b32 s48, s60, 6\ns_lshl_b32 s49, s61, 1\ns_add_u32 s48, s48, s49')
    a('v_lshl_add_u32 v27, v8, 1, v6\nv_lshlrev_b32 v31, 2, v27\nv_and_b32 v27, 7, v27\nv_lshl_add_u32 v27, v27, 3, s48')
    a('v_bfe_u32 v30, v1, 3, 1\nv_lshl_add_u32 v27, v30, 2, v27\nv_bfe_u32 v30, v1, 2, 1\nv_add_u32 v27, v27, v30\nv_lshlrev_b32 v30, 1, v27\nv_lshlrev_b32 v27, 2, v27')
    a('v_lshlrev_b32 v29, 4, v1\nv_bfe_u32 v28, s30, v29, 8\nv_add_u32 v29, 8, v29\nv_bfe_u32 v29, s30, v29, 8')
    a('v_lshlrev_b32 v9, 8, v9\nv_lshl_add_u32 v9, v8, 3, v9\nv_lshlrev_b32 v8, 8, v5\nv_lshl_add_u32 v8, v7, 3, v8\nv_lshlrev_b32 v6, 3, v6\nv_mov_b32 v23, s30')
    a(f's_lshl_b32 s49, s61, 7\ns_lshl_b32 s64, s60, 12\ns_add_u32 s64, s64, s49\ns_add_u32 s64, s64, {WS_T2}')
    a(f's_lshl_b32 s65, s33, 11\ns_add_u32 s65, s65, {WS_X1}\ns_lshl_b32 s66, s53, 4\ns_add_u32 s66, s66, s65\ns_lshl_b32 s48, s53, 7\ns_add_u32 s65, s65, s48')
    a(f's_mul_i32 s67, s60, 7168\ns_add_u32 s67, s67, s49\ns_lshl_b32 s49, s33, 6\ns_add_u32 s67, s67, s49\ns_add_u32 s67, s67, {WS_T3}\ns_add_u32 s68, s67, 4096')
    a(f's_lshl_b32 s49, s33, 3\ns_lshl_b32 s62, 0xff, s49\ns_mov_b32 s63, s62\ns_movk_i32 s48, {WS_MODF}\ns_movk_i32 s49, {WS_MODF + 21*256}')
    spin_lds(C_ML, 2)
    a('global_load_ushort v24, v30, s[4:5]\ns_mov_b32 s97, 0\nL_clp:\ns_mov_b64 exec, -1\nbuffer_load_dword v25, v27, s[36:39], s48 offen sc1\nbuffer_load_dword v26, v27, s[36:39], s49 offen sc1')
    a('s_mov_b32 exec_hi, 0\nbuffer_load_dword v16, v10, s[36:39], s51 offen offset:2048 sc1\nbuffer_load_dwordx4 v[12:15], v11, s[36:39], s50 offen sc1'); cap()
    a('s_waitcnt vmcnt(0)\nv_cmp_ne_u32 s[52:53], s30, v16\ns_mov_b64 exec, -1\nv_xor_b32 v25, s34, v25\nv_xor_b32 v26, s34, v26\nv_or_b32 v2, v25, v26\nv_cmp_ne_u16 vcc, 0, v2')
    a(f's_or_b64 vcc, vcc, s[52:53]\ns_cbranch_vccnz L_clp\nv_mov_b32 v2, 1\nv_lshlrev_b32 v24, 16, v24\ns_mov_b32 exec_hi, 0\nds_write_b32 v3, v2 offset:{C_C}\ns_branch L_mlc')
    a('L_mlp:\nbuffer_load_dwordx4 v[12:15], v11, s[36:39], s50 offen sc1'); cap()
    a('s_waitcnt vmcnt(0)\nL_mlc:\nv_cmp_ne_u32 vcc, s30, v14\nv_cmp_ne_u16 s[52:53], s34, v12\ns_or_b64 exec, vcc, s[52:53]\ns_cbranch_execnz L_mlp')
    a('s_mov_b64 exec, -1')
    ts(9)
    a('v_and_b32 v12, 0xffff0000, v12')
    row_red('v_max_f32', 'v14', 'v12')
    a('v_mov_b32 v5, v14\nv_permlane16_swap_b32 v14, v5\nv_max_f32 v14, v14, v5')
    a(f'v_sub_f32 v12, v12, v14\nv_mul_f32 v12, {LOG2E:#x}, v12\nv_exp_f32 v12, v12\nv_mul_f32 v13, v13, v12')
    row_red('v_add_f32', 'v13')
    a(f'v_mov_b32 v5, v13\nv_permlane16_swap_b32 v13, v5\nv_add_f32 v13, v13, v5\nv_rcp_f32 v13, v13\ns_mov_b32 exec_hi, 0\nv_mul_f32 v12, v12, v13\nds_write_b32 v4, v12 offset:{L_WT}')
    a('s_mov_b64 exec, -1')
    RED()
    a('L_wo:')
    a('s_cmp_ge_u32 s52, 7\ns_cselect_b32 s51, 1, 0')
    a('s_lshr_b32 s48, s35, 2\ns_lshl_b32 s48, s48, 7\ns_and_b32 s49, s35, 1\ns_lshl_b32 s49, s49, 6\ns_add_u32 s48, s48, s49')
    a(f's_and_b32 s49, s35, 2\ns_lshl_b32 s49, s49, 1\ns_add_u32 s48, s48, s49\ns_lshl_b32 s48, s48, 7\ns_add_u32 s48, s48, {L_WO}')
    a('v_lshlrev_b32 v12, 11, v9\nv_lshl_add_u32 v12, v8, 3, v12\nv_add_u32 v12, s48, v12')
    for j in range(8): a(f'ds_read_b64 v[{RAW+2*j}:{RAW+2*j+1}], v12 offset:{(8*(j>>2) + (j&3)) * 128}')
    a('v_lshrrev_b32 v4, 3, v1\nv_and_b32 v5, 7, v1\nv_lshlrev_b32 v10, 11, v4\nv_lshl_add_u32 v10, v5, 4, v10')
    a('v_lshl_add_u32 v5, v5, 2, v9\nv_lshl_add_u32 v5, v5, 1, s26\nv_lshlrev_b32 v4, 4, v4')
    a('s_lshl_b32 s48, s31, 16\ns_lshr_b32 s49, s35, 2\ns_lshl_b32 s49, s49, 10\ns_add_u32 s48, s48, s49\ns_lshl_b32 s49, s51, 9\ns_add_u32 s48, s48, s49')
    a(f's_and_b32 s49, s35, 3\ns_lshl_b32 s49, s49, 7\ns_add_u32 s48, s48, s49\ns_add_u32 s60, s48, {WS_O}')
    a('s_add_u32 s61, s60, 0x4000\ns_add_u32 s62, s60, 0x8000\ns_add_u32 s63, s60, 0xc000')
    a('v_lshl_add_u32 v7, v8, 4, s27\nv_lshl_add_u32 v11, v9, 4, s26')
    a('s_waitcnt lgkmcnt(0)')
    for r in range(4):
        for e in range(4):
            lo = RAW + 4 * r + (e >> 1)
            a(f'v_perm_b32 v{BOP + 4*e + r}, v{lo+2}, v{lo}, {"s57" if e & 1 else "s56"}')
    for i in range(4): a(f's_mov_b64 s[{64+2*i}:{65+2*i}], -1')
    for r in range(0, 16, 2): a(f'v_mov_b64 v[{32+r}:{33+r}], -1')
    ts(8)
    spin_lds(C_C, 1)
    spin_lds(C_V2, 2)
    ts(9)
    t1l = '\n'.join(f's_mov_b64 exec, s[{64+2*i}:{65+2*i}]\nbuffer_load_dwordx4 v[{32+4*i}:{35+4*i}], v10, s[36:39], s{60+i} offen sc1' for i in range(4)) + '\ns_mov_b64 exec, -1'
    a('s_mov_b32 s97, 0\ns_mov_b32 s59, 0'); a(t1l); a('s_waitcnt vmcnt(0)\ns_branch L_t1w')
    a('L_t1:'); a(t1l)
    cap(19)
    a(f'L_t1w:\nds_read_b128 v[24:27], v4 offset:{L_WT}\ns_waitcnt vmcnt({T1D}) lgkmcnt(0)')
    for i in range(4): a(f'v_cmp_eq_u32 s[{64+2*i}:{65+2*i}], -1, v{35+4*i}')
    a('v_cmp_eq_u32 vcc, -1, v27\ns_or_b64 s[72:73], s[64:65], s[66:67]\ns_or_b64 s[74:75], s[68:69], s[70:71]\ns_or_b64 s[72:73], s[72:73], s[74:75]\ns_or_b64 s[72:73], s[72:73], vcc\ns_cbranch_scc1 L_t1\nL_t1f:')
    x = ['L_t1x:', 's_cmp_eq_u32 s59, 1', 's_cbranch_scc1 L_t1d', 's_waitcnt vmcnt(0)', 'v_max3_u32 v13, v24, v25, v26']
    for r in range(32, 48, 2): x.append(f'v_max3_u32 v13, v13, v{r}, v{r+1}')
    x += ['v_cmp_eq_u32 vcc, -1, v13', 's_mov_b32 s59, 1', 's_cbranch_vccz L_t1f', 's_mov_b32 s59, 0']
    x += [f's_mov_b64 s[{64+2*i}:{65+2*i}], -1' for i in range(4)] + ['s_branch L_t1']
    slow.append('\n'.join(x))
    for i in range(4):
        w = 24 + (i & 2); sel = i & 1
        for h in (0, 2):
            if i == 0: a(f'v_pk_mul_f32 v[{12+h}:{13+h}], v[{32+h}:{33+h}], v[{w}:{w+1}] op_sel:[0,{sel}] op_sel_hi:[1,{sel}]')
            else: a(f'v_pk_fma_f32 v[{12+h}:{13+h}], v[{32+4*i+h}:{33+4*i+h}], v[{w}:{w+1}], v[{12+h}:{13+h}] op_sel:[0,{sel},0] op_sel_hi:[1,{sel},1]')
    a('v_permlane32_swap_b32 v12, v14\nv_permlane32_swap_b32 v13, v15\nv_pk_add_f32 v[12:13], v[12:13], v[14:15]\nv_permlane16_swap_b32 v12, v13\nv_add_f32 v12, v12, v13')
    a('v_add_f32_dpp v12, v12, v12 row_ror:8 row_mask:0xf bank_mask:0xf')
    a(f'v_cvt_pk_bf16_f32 v13, v12, v12\nv_cmp_u_f32 vcc, v12, v12\nds_write_b16 v5, v13\nds_read_b128 v[{AOP}:{AOP+3}], v11\ns_cbranch_vccnz L_t1x\nL_t1d:')
    cnt(); ts(11)
    a('s_waitcnt lgkmcnt(0)')
    for e in range(4): a(f'v_mfma_f32_16x16x32_bf16 v[{DD+4*e}:{DD+4*e+3}], v[{AOP}:{AOP+3}], v[{BOP+4*e}:{BOP+4*e+3}], 0')
    a(f's_nop 3\ns_mov_b64 exec, 0xffff\nds_write2_b32 v7, v{DD}, v{DD+4} offset0:64 offset1:65\nds_write2_b32 v7, v{DD+8}, v{DD+12} offset0:66 offset1:67\ns_mov_b64 exec, -1')
    a('s_waitcnt lgkmcnt(0)\ns_barrier')
    a('s_branch L_end' if TS else 's_endpgm')
    a('L_ffn:')
    a('s_cmp_ge_u32 s35, 7\ns_cbranch_scc1 L_end')
    RAW2, B2 = 112, 32
    a('s_lshl_b32 s51, s33, 2\ns_add_u32 s51, s51, s32\ns_sub_u32 s51, s51, 24')
    a(f's_mul_i32 s49, s51, {64*896}\ns_lshl_b32 s50, s35, 7\ns_add_u32 s49, s49, s50')
    a(f'v_lshrrev_b32 v4, 3, v1\nv_and_b32 v6, 7, v1\nv_lshlrev_b32 v5, 4, v6\nv_mul_u32_u24 v13, {8*896}, v4\nv_add_u32 v13, v13, v5')
    a('v_and_b32 v7, 28, v30\nv_lshlrev_b32 v7, 2, v7\nv_lshl_add_u32 v7, v6, 1, v7\nv_add_u32 v7, s26, v7')
    a(f'v_mul_u32_u24 v14, 3584, v4\nv_add_u32 v14, v14, v5\ns_mul_i32 s48, s35, {64*3584}\ns_lshl_b32 s50, s51, 7\ns_add_u32 s48, s48, s50')
    a(f's_mov_b64 s[40:41], s[16:17]\ns_mov_b32 s42, {0 if ABL & 4 else 0x188000}\ns_mov_b64 s[44:45], s[18:19]\ns_mov_b32 s46, {0 if ABL & 4 else 0x188000}')
    if NE:
        a(f's_lshl_b32 s50, s35, 13\ns_add_u32 s50, s50, {L_WO}\nv_lshl_add_u32 v25, v1, 4, s50')
        for j in range(8): a(f'ds_read_b128 v[{RAW+4*j}:{RAW+4*j+3}], v25 offset:{j*1024}')
    a(f's_add_u32 s54, s27, {WS_MODF + 7*256}')
    poll_tag('v30', 's54 offen', 's54 offen offset:1792', 24)
    a('v_add_f32 v25, 1.0, v25'); rnd('v25', 'v25')
    a(f's_lshl_b32 s53, s33, 11\ns_add_u32 s53, s53, {WS_X1}\ns_add_u32 s52, s53, s27\nv_lshlrev_b32 v5, 4, v8\nv_min_u32 v5, 0xd0, v5\nv_mov_b32 v26, {INV448:#x}\nv_cmp_lt_u32 vcc, 13, v8\nv_cndmask_b32 v26, v26, 0, vcc')
    tagreg('v9', 'v27')
    spin_lds(FG, 2)
    a('buffer_load_dword v144, v27, s[36:39], s52 offen sc1\nbuffer_load_dword v144, v5, s[36:39], s53 offen offset:1792 sc1')
    if NE < 28:
        if NE: a(f's_cmp_lt_u32 s35, {NE // 4}\ns_cbranch_scc1 L_fw2')
        loads128(RAW, 's[40:43]', 'v14', 's48', 8 * 3584, NTW)
        a('L_fw2:')
    loads128(RAW2, 's[44:47]', 'v13', 's49', 896, NTW)
    ts(8)
    a(f's_mul_i32 s48, s35, 7168\ns_lshl_b32 s49, s51, 8\ns_add_u32 s48, s48, s49\ns_add_u32 s48, s48, {WS_T3}\nv_mov_b32 v10, 0x3727c5ac')
    a('s_waitcnt vmcnt(8)')
    perms128(BOP, RAW)
    perms128(B2, RAW2, waits=lambda r: f's_waitcnt vmcnt({6 - 2*r})')
    ts(9)
    xl = lambda k: f'buffer_load_dword v{112+8*k}, v27, s[36:39], s52 offen sc1\nbuffer_load_dwordx4 v[{116+8*k}:{119+8*k}], v5, s[36:39], s53 offen offset:1792 sc1'
    a('s_mov_b32 s97, 0'); a(xl(0)); a('s_sleep 1\nL_xp:')
    cap()
    for k in range(2):
        x = 112 + 8 * k
        a(xl(1 - k))
        a(f's_waitcnt vmcnt(2)\nv_xor_b32 v14, s34, v{x}\nv_xor_b32 v15, s30, v{x+5}\nv_xor_b32 v16, s30, v{x+7}\nv_and_b32 v17, 0xffff, v14')
        a(f'v_mul_f32 v12, v26, v{x+4}\nv_or3_b32 v15, v15, v16, v17\nv_mul_f32 v13, v26, v{x+6}\nv_cmp_ne_u32 vcc, 0, v15')
        a('s_cbranch_vccz L_xd' if k == 0 else 's_cbranch_vccnz L_xp')
    a('L_xd:')
    cnt(); ts(11)
    for sh in (8, 4, 2, 1):
        for v in ('v12', 'v13'): a(f'v_add_f32_dpp {v}, {v}, {v} row_ror:{sh} row_mask:0xf bank_mask:0xf')
    if EXACT:
        a('v_fma_f32 v13, -v12, v12, v13\nv_max_f32 v13, 0, v13')
        ln_tail('v14', 'v12', 'v13', 'v14')
        a('v_mul_f32 v14, v14, v25'); rnd('v14', 'v14'); a('v_add_f32 v14, v14, v24')
    else:
        a('v_sub_f32 v14, v14, v12\nv_fma_f32 v13, -v12, v12, v13\nv_mul_f32 v14, v14, v25\nv_max_f32 v13, 0, v13\nv_add_f32 v13, v10, v13\nv_rsq_f32 v13, v13\nv_fma_f32 v14, v14, v13, v24')
    a('v_cvt_pk_bf16_f32 v14, v14, v14\nds_write_b16 v7, v14'); a(rd_a)
    gemv128(DD, BOP)
    a(f'ds_write_b32 v28, v{DD} offset:{L_RED}\ns_waitcnt lgkmcnt(0)\ns_barrier')
    sum7('v12', 12, 'v27')
    if EXACT: rnd('v12', 'v12')
    silu('v12', 'v12', 'v13')
    a('v_cvt_pk_bf16_f32 v12, v12, v12\nds_write_b16 v29, v12'); a(rd_a)
    gemv128(DD, B2)
    a(f'v_and_or_b32 v{DD}, v{DD}, s55, v9\nbuffer_store_dword v{DD}, v27, s[36:39], s48 offen sc1')
    ts(12)
    a('L_end:')
    if TS:
        a('s_mov_b64 exec, -1')
        ts(15)
    if TS and PROBE is not None:
        probe(a, PROBE, lab)
    elif TS:
        if TSK is not None: a(f's_bitcmp1_b32 {sum(1 << w for w in TSW)}, s3\ns_cbranch_scc0 L_exit')
        a(f's_mul_i32 s48, s2, {NW}\ns_add_u32 s48, s48, s3\ns_lshl_b32 s48, s48, 6\ns_add_u32 s48, s48, {WS_TS}')
        a('v_mbcnt_lo_u32_b32 v2, -1, 0\nv_lshlrev_b32 v2, 2, v2\ns_mov_b64 exec, 0xffff\nbuffer_store_dword v0, v2, s[36:39], s48 offen')
    a('L_exit:\ns_endpgm')
    for x in slow: a(x)
    a('L_last:')
    a.L = hz.fix(a.L)
    a.tail(168, 102)
    t = a.text().replace('.p2align 8\n', f'.p2align 12\n.fill {PAD // 4}, 4, 0xbf810000\n.p2align 8\n', 1)
    return t.replace('.amdhsa_user_sgpr_count 2', '.amdhsa_float_denorm_mode_32 3\n.amdhsa_user_sgpr_count 2')
if __name__ == '__main__':
    open('v20.s', 'w').write(gen())
    open('v20_ts.s', 'w').write(gen(TS=True))
    for arg in sys.argv[1:]:
        nm, kv = arg.split('=')
        kw = {k: eval(v.replace('/', ',')) for k, v in (x.split(':') for x in kv.split(','))}
        open(f'v20_{nm}_ts.s', 'w').write(gen(TS=True, **kw))
        open(f'v20_{nm}.s', 'w').write(gen(**kw))
```
